```python
import torch

def _softmax(x, axis=-1):
    return torch.softmax(x, dim=axis)
def _gelu(x):
    return torch.nn.functional.gelu(x, approximate="tanh")
def _silu(x):
    return torch.nn.functional.silu(x)
def _sigmoid(x):
    return torch.sigmoid(x)
def _layernorm(x, axis=-1, eps=1e-5):
    m = x.mean(dim=axis, keepdim=True)
    v = x.var(dim=axis, keepdim=True, unbiased=False)
    return (x - m) / torch.sqrt(v + eps)
def _scatter_add(tgt, idx, src, axis=0):
    return tgt.clone().index_add_(axis, idx, src)
def _segment_sum(src, seg, n):
    out = torch.zeros((n,) + src.shape[1:], dtype=src.dtype)
    return out.index_add_(0, seg, src)
def _pad(x, pw):
    flat = tuple(v for pair in reversed(pw) for v in pair)
    return torch.nn.functional.pad(x, flat)

kernel_name = 'standalone__deep_cross_xdeepfm__recsys'

def setup_inputs():

    _w = (lambda a: (lambda t: t.to(torch.bfloat16) if t.is_floating_point() else t)(torch.as_tensor(a)))
    B, F, D, L = 1024, 26, 64, 3
    V = min(1000, 100000)
    Din = F * D
    return {
        "idx": _w((lambda lo, hi, *s: torch.randint(lo, hi, s))(0, V, B, F).to(torch.int64)),
        "table": _w((lambda *s: torch.randn(*s, dtype=torch.bfloat16) * 0.8)(V, D)),
        "ws_cin": _w((lambda *s: torch.randn(*s, dtype=torch.bfloat16) * 0.2)(L, F, F, F) * (1.0 / F)),
        "w_cin_out": _w((lambda *s: torch.randn(*s, dtype=torch.bfloat16) * 0.2)(L * F) * ((L * F) ** -0.5)),
        "w_dnn1": _w((lambda *s: torch.randn(*s, dtype=torch.bfloat16) * 0.8)(Din, Din) * (Din ** -0.5)),
        "b_dnn1": _w((lambda *s: torch.randn(*s, dtype=torch.bfloat16) * 6.4)(Din) * 0.1),
        "w_dnn2": _w((lambda *s: torch.randn(*s, dtype=torch.bfloat16) * 0.2)(Din) * (Din ** -0.5)),
        "b_out": _w((lambda *s: torch.randn(*s, dtype=torch.bfloat16) * 0.4)(1)),
    }

def reference(idx, table, ws_cin, w_cin_out, w_dnn1, b_dnn1, w_dnn2, b_out):
    x0 = table[idx]
    B = x0.shape[0]
    L = ws_cin.shape[0]
    xk = x0
    pooled = []
    for l in range(L):
        xk = torch.einsum('bid,bjd,hij->bhd', xk, x0, ws_cin[l])
        pooled.append(xk.sum(axis=-1))
    p_plus = torch.stack(pooled, axis=1).reshape(B, -1)
    logit_cin = p_plus @ w_cin_out
    h = x0.reshape(B, -1)
    h = _gelu(h @ w_dnn1 + b_dnn1)
    logit_dnn = h @ w_dnn2
    return logit_cin + logit_dnn + b_out
```

```python
from ir import *
KN = 'standalone__deep_cross_xdeepfm__recsys'
HDR_COMMENT = open('standalone__deep_cross_xdeepfm__recsys.s.ref').read().split('; Override launch')[0]

def kd(name, nv, acc, ns=100):
    return f'''.p2align 6
.amdhsa_kernel {name}
  .amdhsa_next_free_vgpr {nv}
  .amdhsa_next_free_sgpr {ns}
  .amdhsa_accum_offset {acc}
  .amdhsa_group_segment_fixed_size 0
  .amdhsa_kernarg_size 88
  .amdhsa_user_sgpr_count 2
  .amdhsa_user_sgpr_kernarg_segment_ptr 1
  .amdhsa_system_sgpr_workgroup_id_x 1
.end_amdhsa_kernel
'''
def kstart(name):
    return f'''.globl {name}
.p2align 8
.type {name},@function
{name}:
'''
def srd(d, base, nbytes):
    return I(f's_mov_b32 s{d}, s{base}\ns_mov_b32 s{d+1}, s{base+1}\ns_mov_b32 s{d+2}, {nbytes}\ns_mov_b32 s{d+3}, 0x20000')

def vr(b, n): return f'v[{b}:{b+n-1}]' if n > 1 else f'v{b}'
def ar(b, n): return f'a[{b}:{b+n-1}]' if n > 1 else f'a{b}'

def slot(t):
    if t < 176:
        d = t // 13; i = 2 * (t % 13)
        return ('mul', i, (i + d) % 26)
    t2 = t - 176
    if t2 < 13: return ('lin', 2 * t2)
    if t2 == 13: return ('one',)
    return ('zero',)
NFRAG = 46
def fragidx(s, mat):
    if s < 22: return 2 * s + mat
    assert mat == 1
    return 44 + (s - 22)
WS_CW = 0
WS_PART = 65536
GELU_C0 = -2.0 * 0.7978845608028654 * 1.4426950408889634
GELU_C1 = GELU_C0 * 0.044715
import struct
def f2u(x): return struct.unpack('<I', struct.pack('<f', x))[0]

def ts_stamp(i, first=64):
    return I(f's_memrealtime s[{first+2*i}:{first+2*i+1}]')
def ts_out(n, lbl, wsreg=24, first=64, slot_expr='s2', base=1<<24, vt=8):
    L = I(f'''s_waitcnt lgkmcnt(0)
    s_mul_i32 s3, {slot_expr}, {8*n}
    s_add_u32 s{wsreg}, s{wsreg}, s3
    s_addc_u32 s{wsreg+1}, s{wsreg+1}, 0
    s_add_u32 s{wsreg}, s{wsreg}, {base}
    s_addc_u32 s{wsreg+1}, s{wsreg+1}, 0
    v_mov_b32 v1, 0
    v_cmp_eq_u32 vcc, 0, v0
    s_and_saveexec_b64 s[26:27], vcc
    s_cbranch_execz {lbl}''')
    for i in range(n):
        L += I(f'v_mov_b32 v{vt}, s{first+2*i}\nv_mov_b32 v{vt+1}, s{first+2*i+1}\nglobal_store_dwordx2 v1, v[{vt}:{vt+1}], s[{wsreg}:{wsreg+1}] offset:{8*i}\ns_nop 1')
    L += I(f'{lbl}:')
    return L
```

```python
from common import *
RING = 131072
IDXS = RING + 16384
ACC = 0
WF = 128
XF = 144
def acc(nb, mb): return ar(ACC + 16 * (mb * 2 + nb), 16)
def wf(buf, nb, q=None):
    b = WF + 8 * buf + 4 * nb
    return ar(b, 4) if q is None else ar(b + 2 * q, 2)
def xf(buf, mb): return ar(XF + 16 * buf + 4 * mb, 4)

def dnn_prologue(XI, mid=None):
    L = []
    L += I('''v_and_b32 v1, 63, v0
    v_lshrrev_b32 v8, 6, v0
    v_lshlrev_b32 v9, 4, v1
    v_readfirstlane_b32 s40, v8
    v_lshrrev_b32 v10, 3, v1
    v_and_b32 v11, 7, v1
    v_lshrrev_b32 v12, 1, v10
    v_xor_b32 v13, v11, v12
    v_lshlrev_b32 v13, 4, v13
    v_lshl_add_u32 v2, v10, 7, v13
    v_xor_b32 v3, 64, v2
    s_lshl_b32 s58, s40, 12''')
    L += I('s_waitcnt lgkmcnt(0)')
    L += srd(28, 4, 106496) + srd(32, 6, 128000) + srd(36, 12, 1664 * 3328)
    L += I(f'''s_add_u32 m0, s58, {IDXS}
    s_mul_i32 s60, s42, 13312
    s_add_u32 s60, s60, s58''')
    for u in range(4): L += I(f'buffer_load_dwordx4 v9, s[28:31], s60 offen offset:{1024*u} lds', tag='idx')
    L += I('s_lshl_b32 s61, s43, 2\ns_add_u32 s61, s61, s40')
    for q in range(8):
        L += I('s_and_b32 s62, s61, 31\ns_lshl_b32 s62, s62, 12\ns_mov_b32 m0, s62\ns_add_u32 s61, s61, 4')
        for u in range(4): L += I(f'buffer_load_dwordx4 v{2 + (u & 1)}, s[32:35], s62 offen offset:{1024*u} lds', tag='tab')
    L += I(f'''v_and_b32 v12, 1, v12
    v_lshlrev_b32 v12, 2, v12
    v_xor_b32 v12, v11, v12
    v_lshlrev_b32 v12, 4, v12
    s_movk_i32 s58, 3328
    v_mad_u32_u24 v4, v10, s58, v12
    v_add_u32 v5, {8*3328 - 1024}, v4
    s_lshl_b32 s57, s40, 11
    s_add_u32 s57, s57, {RING}''')
    L += I('''s_mul_i32 s61, s42, 13
    s_lshr_b32 s61, s61, 3
    s_mul_i32 s62, s40, 13
    s_lshl_b32 s63, s41, 7''')
    for i in range(13):
        L += I(f'''s_add_u32 s58, s61, s62
        s_mul_i32 s{44+i}, s58, {32*3328}
        s_add_u32 s{44+i}, s{44+i}, s63
        s_mov_b32 s{76+i}, s58
        s_add_u32 s61, s61, 1
        s_cmp_eq_u32 s61, 13
        s_cselect_b32 s61, 0, s61''')
    L += wdma(0) + wdma(1)
    L += I('''v_bfe_u32 v10, v1, 2, 2
    v_lshrrev_b32 v11, 5, v1
    v_lshl_add_u32 v12, v11, 3, v10
    v_lshlrev_b32 v12, 7, v12
    v_bfe_u32 v13, v1, 4, 1
    v_lshl_add_u32 v12, v13, 5, v12
    v_and_b32 v13, 3, v1
    v_lshl_add_u32 v12, v13, 3, v12
    v_lshrrev_b32 v13, 1, v10
    v_lshlrev_b32 v13, 6, v13
    v_xor_b32 v12, v12, v13
    v_add_u32 v6, s57, v12
    v_xor_b32 v7, 64, v6
    v_lshlrev_b32 v11, 4, v11
    v_and_b32 v10, 31, v1
    v_mul_u32_u24 v10, 104, v10
    s_movk_i32 s59, 0x70''')
    for mb in range(4):
        L += I(f's_add_u32 s58, s40, {mb}\ns_and_b32 s58, s58, 3\ns_mul_i32 s58, s58, 3328\ns_add_u32 s58, s58, {IDXS}\nv_add_u32 v{12+mb}, s58, v10')
    if mid: L += mid
    L += [WaitTag('idx')] + I('s_barrier')
    for i in range(13):
        L += I(f's_lshr_b32 s58, s{76+i}, 1\ns_lshl_b32 s58, s58, 2')
        for mb in range(4):
            r = XI + 4 * i + mb
            L += I(f'v_add_u32 v{r}, s58, v{12+mb}\nds_read_b32 v{r}, v{r}')
    L += I('s_waitcnt lgkmcnt(0)\ns_barrier')
    L += wdma(2) + wdma(3)
    for i in range(13):
        L += I(f's_and_b32 s58, s{76+i}, 1\ns_lshl_b32 s58, s58, 6\nv_xor_b32 v8, s58, v11')
        for mb in range(4):
            r = XI + 4 * i + mb
            L += I(f'v_lshlrev_b32 v9, 3, v{r}\nv_bitop3_b32 v9, v9, s59, v8 bitop3:0x6a\nv_lshl_add_u32 v{r}, v{r}, 7, v9')
    return L

def wdma(n):
    i, t = n >> 1, n & 1
    L = I(f's_add_u32 m0, s57, {(n & 3) * 8192}')
    if t == 0: so = f's{44+i}'
    else:
        L += I(f's_add_u32 s{44+i}, s{44+i}, {16*3328}'); so = f's{44+i}'
    L += I(f'buffer_load_dwordx4 v4, s[36:39], {so} offen lds', tag=f'W{n}')
    L += I(f'buffer_load_dwordx4 v5, s[36:39], {so} offen offset:1024 lds', tag=f'W{n}')
    return L

def step_reads(n, XI):
    i, t = n >> 1, n & 1; buf = n & 1
    L = [WaitTag(f'W{n}')]
    for nb in range(2):
        for q in range(2):
            L += I(f'ds_read_b64_tr_b16 {wf(buf, nb, q)}, v{6+nb} offset:{(n & 3) * 8192 + q * 512}', tag=f'T{n}')
    for mb in range(4):
        r = XI + 4 * i + mb
        if t == 1: L += I(f'v_xor_b32 v{r}, 32, v{r}')
        L += I(f'ds_read_b128 {xf(buf, mb)}, v{r}')
    return L

def dnn_main(XI, filler=None, per=0):
    L = []
    L += [WaitTag('tab')] + I('s_barrier')
    L += step_reads(0, XI)
    for n in range(26):
        buf = n & 1
        mf = []
        for mb in range(4):
            for nb in range(2):
                c = '0' if n == 0 else acc(nb, mb)
                mf += I(f'v_mfma_f32_32x32x16_bf16 {acc(nb, mb)}, {wf(buf, nb)}, {xf(buf, mb)}, {c}')
        side = []
        if n + 1 < 26: side += step_reads(n + 1, XI)
        if n + 4 < 26: side += [WaitTag(f'T{n}')] + wdma(n + 4)
        out = []
        k = 0
        per_m = [2, 2, 2, 2, 2, 2, 3, 9]
        for j, m in enumerate(mf):
            out.append(m)
            c = 0
            while k < len(side) and c < per_m[j]:
                out.append(side[k])
                if not isinstance(side[k], WaitTag): c += 1
                k += 1
        out += side[k:]
        L += out
    return L

def gelu(x, t1, t2, c1s='s60', c0v=None):
    return I(f'''v_mul_f32 v{t1}, v{x}, v{x}
    v_fma_f32 v{t1}, v{t1}, {c1s}, v{c0v}
    v_mul_f32 v{t1}, v{t1}, v{x}
    v_exp_f32 v{t1}, v{t1}
    v_add_f32 v{t1}, 1.0, v{t1}
    v_rcp_f32 v{t1}, v{t1}
    v_mul_f32 v{x}, v{x}, v{t1}''')
```

```python
import re

REG = re.compile(r'(?<![\w.])([vas])(\d+)\b|(?<![\w.])([vas])\[(\d+):(\d+)\]|\b(vcc|exec|m0)\b')

def regs_of(tok):
    out = []
    for m in REG.finditer(tok):
        if m.group(1): out.append(m.group(1) + m.group(2))
        elif m.group(3): out += [m.group(3) + str(i) for i in range(int(m.group(4)), int(m.group(5)) + 1)]
        else: out.append(m.group(6))
    return out

TRANS = ('v_exp_f32', 'v_log_f32', 'v_rcp_f32', 'v_rsq_f32', 'v_sqrt_f32', 'v_sin_f32', 'v_cos_f32')

class Ins:
    __slots__ = ('text', 'op', 'defs', 'uses', 'kind', 'tag', 'ops', 'passes', 'srcc', 'wide', 'arg', 'after')
    def __init__(self, text, tag=None):
        self.text = text; self.tag = tag; self.passes = 0; self.srcc = (); self.wide = (); self.arg = None; self.after = None
        t = text.split(';')[0].strip()
        if t.endswith(':'):
            self.op = 'label'; self.kind = 'label'; self.defs = set(); self.uses = set(); return
        if t.startswith('.'):
            self.op = 'dir'; self.kind = 'dir'; self.defs = set(); self.uses = set(); return
        p = t.split(None, 1); op = p[0]; self.op = op
        rest = p[1] if len(p) > 1 else ''
        ops = [x.strip() for x in re.split(r',\s*(?![^\[]*\])', rest)] if rest else []
        self.ops = ops
        R = [regs_of(x) for x in ops]
        allr = [r for x in R for r in x]
        d, u = [], []
        if op.startswith('v_mfma'):
            k = 'mfma'; d = R[0]; u = R[1] + R[2] + R[3]; self.srcc = tuple(R[3])
            if '32x32x16' in op: self.passes = 8
            elif '16x16x32' in op: self.passes = 4
            elif '16x16x4_f32' in op: self.passes = 108
            elif '32x32x2_f32' in op: self.passes = 116
            else: raise ValueError(op)
        elif op.startswith('ds_read') or op.startswith('ds_bpermute') or op.startswith('ds_swizzle') or (op.startswith('ds_') and '_rtn' in op):
            k = 'ds'; d = R[0]; u = [r for x in R[1:] for r in x]
            if 'd16' in op: u += R[0]
        elif op.startswith('ds_'):
            k = 'ds'; u = allr
        elif op.startswith('buffer_load') or op.startswith('global_load'):
            k = 'vm'
            if re.search(r'\blds\b', t) or '_lds_' in op:
                u = allr + ['m0']; k = 'vm'; self.arg = 'dma'
            else:
                d = R[0]; u = [r for x in R[1:] for r in x]
                if 'd16' in op: u += R[0]
        elif op.startswith('buffer_store') or op.startswith('global_store'):
            k = 'vm'; u = allr
            if 'x3' in op or 'x4' in op: self.wide = tuple(R[0] if op.startswith('buffer') else R[1])
        elif op.startswith('buffer_atomic') or op.startswith('global_atomic'):
            k = 'vm'; u = allr
            if re.search(r'\bsc0\b', t): d = R[0]
        elif op in ('buffer_inv', 'buffer_wbl2'):
            k = 'vm'
        elif op.startswith('s_load') or op.startswith('s_buffer_load') or op in ('s_memtime', 's_memrealtime'):
            k = 'smem'; d = R[0]; u = [r for x in R[1:] for r in x]
        elif op == 's_waitcnt': k = 'wait'
        elif op == 's_nop': k = 'nop'; self.arg = int(ops[0], 0)
        elif op in ('s_barrier', 's_endpgm', 's_sleep', 's_setprio'): k = 'sctl'
        elif op.startswith('s_branch') or op.startswith('s_cbranch'):
            k = 'branch'
        elif op.startswith('s_cmp') or op.startswith('s_bitcmp'): k = 'salu'; u = allr
        elif op.startswith('s_'):
            k = 'salu'; d = R[0]; u = [r for x in R[1:] for r in x]
            if 'saveexec' in op: d = d + ['exec']; u = u + ['exec']
        elif op.startswith('v_'):
            k = 'valu'; d = list(R[0]); u = [r for x in R[1:] for r in x]
            if op.startswith('v_cmpx'): d += ['exec']
            if op.startswith(('v_fmac', 'v_mac', 'v_permlane', 'v_writelane', 'v_dot2c')): u += R[0]
            if op.startswith('v_permlane') and 'swap' in op: d += R[1]
            if op.startswith(('v_add_co', 'v_sub_co', 'v_addc_co', 'v_subb_co')): d += R[1]
            if 'dpp' in op or 'row_' in t or 'quad_perm' in t: self.arg = 'dpp'; u += R[0]
            if 'sdwa' in op: self.arg = 'sdwa'
            if op in TRANS or op.replace('_e32', '').replace('_e64', '') in TRANS: k = 'trans'
        else:
            raise ValueError('unknown op: ' + text)
        self.kind = k; self.defs = set(d); self.uses = set(u)

class WaitTag:
    def __init__(self, tags): self.tags = set(tags if isinstance(tags, (list, tuple, set)) else [tags])

def I(text, tag=None):
    out = []
    for line in text.split('\n'):
        line = line.strip()
        if line and not line.startswith(';'): out.append(Ins(line, tag))
    return out

def isvalu(x): return x.kind in ('valu', 'trans')

def need_states(p, c):
    n = 0
    vd = {r for r in p.defs if r[0] in 'va' and r not in ('vcc',)}
    sd = {r for r in p.defs if r[0] == 's' or r == 'vcc'}
    if isvalu(p):
        if c.kind == 'mfma' and vd & c.uses: n = max(n, 2)
        if c.kind == 'vm' and sd & c.uses: n = max(n, 5)
        if isvalu(c) and sd & c.uses: n = max(n, 4 if c.op.startswith(('v_readlane', 'v_writelane')) else 2)
        if c.kind in ('salu', 'smem') and sd & c.uses: n = max(n, 1)
        if isvalu(c) and c.op.startswith(('v_readlane', 'v_readfirstlane')) and vd & c.uses: n = max(n, 1)
        if isvalu(c) and c.op.startswith('v_permlane') and vd & c.uses: n = max(n, 2)
        if isvalu(c) and c.arg == 'dpp' and vd & c.uses: n = max(n, 2)
        if p.kind == 'trans' and c.kind == 'valu' and vd & c.uses: n = max(n, 1)
        if p.kind == 'trans' and c.kind in ('ds', 'vm') and vd & c.uses: n = max(n, 1)
        if p.arg == 'sdwa' and isvalu(c) and vd & (c.uses | c.defs): n = max(n, 1)
        if 'exec' in p.defs:
            if c.kind == 'mfma': n = max(n, 4)
            if isvalu(c): n = max(n, 5 if c.arg == 'dpp' else 4 if c.op.startswith(('v_readlane', 'v_readfirstlane', 'v_writelane', 'v_permlane')) else 2 if 'exec' in c.uses else 0)
    if p.kind == 'salu' and 'm0' in p.defs and c.kind == 'vm' and c.arg == 'dma': n = max(n, 1)
    if p.kind == 'vm' and p.wide and (set(p.wide) & c.defs): n = max(n, 2)
    if p.kind == 'mfma':
        sg = p.passes > 100; ps = p.passes % 100
        big = {4: 8, 8: 12, 16: 20}[ps] - (2 if sg else 0)
        if c.kind == 'mfma':
            ab = set(regs_of(c.ops[1]) + regs_of(c.ops[2]))
            if p.defs & ab: n = max(n, big)
            if p.defs & set(c.srcc):
                same = (c.ops[3] == p.ops[0] and c.passes == p.passes)
                if not same: n = max(n, {4: 6, 8: 10, 16: 18}[ps])
            elif p.defs & c.defs: n = max(n, big)
        elif c.kind in ('valu', 'trans', 'ds', 'vm'):
            if p.defs & (c.uses | c.defs): n = max(n, big)
            if isvalu(c) and not sg and set(p.srcc) & c.defs: n = max(n, {4: 3, 8: 7, 16: 15}[ps])
    return n

def finalize(prog, verbose=False):
    out = []
    hist = []
    vm = []; lg = []
    stats = {'nops': 0, 'waits': 0}
    def emit(x):
        out.append(x)
        if x.kind in ('label', 'dir'): return
        hist.append(x)
        if len(hist) > 40: hist.pop(0)
    def do_wait(nv, nl):
        parts = []
        if nv is not None and nv < len(vm):
            nv = min(nv, 63); parts.append(f'vmcnt({nv})'); del vm[:len(vm) - nv]
        if nl is not None and nl < len(lg):
            if any(x.kind == 'smem' for x in lg): nl = 0
            nl = min(nl, 15); parts.append(f'lgkmcnt({nl})'); del lg[:len(lg) - nl]
        if parts:
            emit(Ins('s_waitcnt ' + ' '.join(parts))); stats['waits'] += 1
    for x in prog:
        if isinstance(x, WaitTag):
            nv = nl = None
            for i, p in enumerate(vm):
                if p.tag in x.tags: nv = len(vm) - 1 - i
            for i, p in enumerate(lg):
                if p.tag in x.tags: nl = len(lg) - 1 - i
            do_wait(nv, nl); continue
        if x.kind in ('label', 'dir'):
            emit(x); continue
        if x.kind == 'wait':
            m = re.search(r'vmcnt\((\d+)\)', x.text)
            if m: n = int(m.group(1)); del vm[:max(0, len(vm) - n)]
            m = re.search(r'lgkmcnt\((\d+)\)', x.text)
            if m:
                n = int(m.group(1))
                if n == 0 or not any(p.kind == 'smem' for p in lg): del lg[:max(0, len(lg) - n)]
            emit(x); continue
        touch = x.uses | x.defs
        nv = nl = None
        for i, p in enumerate(vm):
            if p.defs & touch: nv = len(vm) - 1 - i
        for i, p in enumerate(lg):
            if p.defs & touch: nl = len(lg) - 1 - i
        do_wait(nv, nl)
        dist = 0; need = 0
        for p in reversed(hist):
            n = need_states(p, x)
            if n - dist > need: need = n - dist
            dist += (p.arg + 1) if p.kind == 'nop' else 1
            if dist > 24: break
        while need > 0:
            k = min(need, 16); emit(Ins(f's_nop {k-1}')); need -= k; stats['nops'] += 1
        emit(x)
        if x.kind == 'vm': vm.append(x)
        if x.kind in ('ds', 'smem'): lg.append(x)
    lines = []
    for x in out:
        lines.append(x.text if x.kind in ('label', 'dir') else '    ' + x.text)
    if verbose: print(stats)
    return '\n'.join(lines)

def interleave(main, filler, pattern=None, per=1, key=lambda x: getattr(x, 'kind', None) == 'mfma'):
    out = []; fi = 0; acc = 0.0
    for x in main:
        out.append(x)
        if key(x):
            acc += per
            while acc >= 1 and fi < len(filler):
                out.append(filler[fi]);
                if not isinstance(filler[fi], WaitTag): acc -= 1
                fi += 1
    out += filler[fi:]
    return out
```

```python
from common import *
U3A, U3B, WC2X, MF, MG, CST, OUT, DUMMY = 0, 4096, 8192, 12288, 16384, 20480, 20736, 24576
def prep_code(publish, pol='sc0 sc1'):
    L = []
    L += srd(28, 8, 105456)
    L += srd(32, 24, NFRAG * 1024)
    L += I('''v_and_b32 v4, 1, v0
    v_subrev_u32 v5, 44, v0
    v_lshrrev_b32 v5, 1, v5
    v_lshl_add_u32 v6, v5, 1, 1
    v_add_u32 v7, 22, v5
    v_cmp_gt_u32 vcc, 22, v5
    v_cndmask_b32 v6, v7, v6, vcc
    v_and_b32 v7, 0xfffe, v0
    v_cmp_gt_u32 vcc, 44, v0
    v_cndmask_b32 v6, v6, v7, vcc
    v_lshlrev_b32 v6, 10, v6
    v_lshl_add_u32 v6, v4, 9, v6
    s_lshl_b32 s41, s40, 4
    v_add_u32 v3, s41, v6
    v_mov_b32 v7, 0x7fffffff
    v_cmp_gt_u32 vcc, 92, v0
    v_cndmask_b32 v3, v7, v3, vcc
    v_mov_b32 v8, 0
    v_mov_b32 v9, 0
    v_mov_b32 v10, 0
    v_mov_b32 v11, 0
    s_cmp_ge_u32 s40, 26
    s_cbranch_scc1 L_prep_store''')
    L += I('''s_load_dwordx8 s[44:51], s[10:11], 104
    s_load_dwordx4 s[52:55], s[10:11], 136
    s_load_dword s56, s[10:11], 152
    v_lshrrev_b32 v1, 6, v0
    v_and_b32 v2, 63, v0
    v_readfirstlane_b32 s42, v1''')
    L += I('''s_lshr_b32 s43, s42, 1
    v_and_b32 v4, 127, v0
    v_lshlrev_b32 v5, 4, v4
    v_cmp_gt_u32 vcc, 85, v4
    v_cndmask_b32 v5, v7, v5, vcc
    s_mul_i32 s57, s43, 1352
    s_add_u32 s57, s57, 70304''')
    for u in range(13):
        L += I(f'buffer_load_dwordx4 {vr(16+4*u,4)}, v5, s[28:31], s57 offen')
        if u < 12: L += I('s_add_u32 s57, s57, 2704')
    L += I('''v_lshlrev_b32 v6, 3, v0
    v_cmp_gt_u32 vcc, 169, v0
    v_cndmask_b32 v6, v7, v6, vcc
    s_mul_i32 s58, s40, 1352
    buffer_load_dwordx2 v[68:69], v6, s[28:31], s58 offen''')
    L += I('''s_and_b32 s59, s42, 1
    s_lshl_b32 s59, s59, 4
    v_and_b32 v12, 15, v2
    v_add_u32 v13, s59, v12
    v_lshrrev_b32 v14, 4, v2
    v_mul_u32_u24 v15, 1352, v14
    v_lshl_add_u32 v15, v13, 1, v15
    v_cmp_gt_u32 vcc, 2, v14
    v_cndmask_b32 v70, v7, v15, vcc
    s_mul_i32 s60, s40, 52
    s_add_u32 s60, s60, 35152''')
    for s in range(7):
        L += I(f'v_mov_b32 v{72+s}, 0')
    for s in range(7):
        L += I(f'buffer_load_short_d16_hi v{72+s}, v{15 if s < 6 else 70}, s[28:31], s60 offen')
        if s < 6: L += I('s_add_u32 s60, s60, 5408')
    L += srd(36, 10, 156)
    L += I('''v_lshlrev_b32 v80, 1, v0
    v_add_u32 v80, 52, v80
    v_cmp_gt_u32 vcc, 26, v0
    v_cndmask_b32 v80, v7, v80, vcc
    v_mov_b32 v81, 0
    v_mov_b32 v82, 0
    buffer_load_short_d16_hi v81, v80, s[36:39], 0 offen
    s_lshl_b32 s61, s40, 1
    v_mov_b32 v83, 0
    buffer_load_short_d16_hi v82, v83, s[36:39], s61 offen''')
    L += I(f'v_mov_b32 v100, {CST+4}')
    L += I('s_movk_i32 s62, 5042')
    for k in range(3):
        o1, o2 = 84 + 2 * k, 85 + 2 * k
        L += I(f'''v_add_u32 v90, {256*k}, v0
        v_cmp_le_u32 vcc, 352, v90
        v_subrev_u32 v91, 352, v90
        v_cndmask_b32 v90, v90, v91, vcc
        v_mov_b32 v92, {MF}
        v_mov_b32 v93, {MG}
        v_cndmask_b32 v92, v92, v93, vcc
        v_bfe_u32 v93, v90, 3, 1
        v_lshrrev_b32 v94, 4, v90
        v_and_b32 v95, 7, v90
        v_lshl_add_u32 v94, v94, 3, v95
        v_mul_lo_u32 v95, v94, s62
        v_lshrrev_b32 v95, 16, v95
        v_mul_u32_u24 v96, 13, v95
        v_sub_u32 v96, v94, v96
        v_lshl_add_u32 v96, v96, 1, v93
        v_add_u32 v97, v96, v95
        v_subrev_u32 v98, 26, v97
        v_cmp_le_u32 vcc, 26, v97
        v_cndmask_b32 v97, v97, v98, vcc
        v_mad_u32_u24 v98, v96, 26, v97
        v_lshl_add_u32 v{o1}, v98, 2, v92
        v_mad_u32_u24 v98, v97, 26, v96
        v_lshl_add_u32 v{o2}, v98, 2, v92
        v_cmp_eq_u32 vcc, 0, v95
        v_cndmask_b32 v{o2}, v{o2}, v100, vcc''')
        if k >= 1:
            L += I(f'''v_lshl_add_u32 v98, v94, 1, v93
            v_cmp_le_u32 vcc, 351, v98
            v_cndmask_b32 v{o1}, v{o1}, v100, vcc
            v_cndmask_b32 v{o2}, v{o2}, v100, vcc''')
        if k == 2:
            L += I(f'''v_subrev_u32 v99, 352, v98
            v_lshlrev_b32 v91, 2, v99
            v_add_u32 v91, {MG + 676*4}, v91
            v_cmp_gt_u32 vcc, 26, v99
            v_cndmask_b32 v{o1}, v{o1}, v91, vcc
            v_mov_b32 v91, {CST}
            v_cmp_eq_u32 vcc, 26, v99
            v_cndmask_b32 v{o1}, v{o1}, v91, vcc''')
    L += I('s_waitcnt lgkmcnt(0)\ns_lshl_b32 s63, s43, 4\ns_sub_u32 s63, 16, s63')
    for u in range(13):
        L += I(f's_lshl_b32 s{44+u}, s{44+u}, s63\ns_and_b32 s{44+u}, s{44+u}, 0xffff0000')
    for u in range(13):
        for e in range(4):
            src = 16 + 4 * u + e
            L += I(f'v_lshlrev_b32 v112, 16, v{src}\nv_and_b32 v113, 0xffff0000, v{src}')
            if u == 0: L += I(f'v_mul_f32 v{104+2*e}, s44, v112\nv_mul_f32 v{105+2*e}, s44, v113')
            else: L += I(f'v_fmac_f32 v{104+2*e}, s{44+u}, v112\nv_fmac_f32 v{105+2*e}, s{44+u}, v113')
    L += I('''v_lshlrev_b32 v112, 5, v0
    ds_write_b128 v112, v[104:107]
    ds_write_b128 v112, v[108:111] offset:16''')
    L += I(f'''v_lshlrev_b32 v104, 16, v68
    v_and_b32 v105, 0xffff0000, v68
    v_lshlrev_b32 v106, 16, v69
    v_and_b32 v107, 0xffff0000, v69
    v_lshlrev_b32 v113, 4, v0
    ds_write_b128 v113, v[104:107] offset:{MF}
    v_mul_u32_u24 v114, 104, v0
    v_mov_b32 v115, {DUMMY - WC2X}
    v_cmp_gt_u32 vcc, 28, v0
    v_cndmask_b32 v114, v115, v114, vcc
    ds_write_b32 v114, v81 offset:{WC2X}
    v_mov_b32 v83, 0
    v_mov_b32 v116, {CST}
    ds_write_b64 v116, v[82:83]
    s_waitcnt lgkmcnt(0)
    s_barrier''')
    L += I(f'''s_lshl_b32 s59, s43, 4
    v_add_u32 v117, s59, v12
    v_mad_u32_u24 v118, v14, 26, v117
    v_lshlrev_b32 v118, 2, v118
    v_mul_u32_u24 v119, 104, v14
    v_add_u32 v119, {WC2X}, v119
    v_cmp_gt_u32 vcc, 26, v117
    v_cndmask_b32 v119, v119, v118, vcc
    v_add_u32 v118, {U3B}, v118''')
    for s in range(7):
        L += I(f'ds_read_b32 v{120+s}, v119 offset:{416*s}\nds_read_b32 v{128+s}, v118 offset:{416*s}')
    for s in range(7):
        L += I(f'v_cndmask_b32 v{128+s}, 0, v{128+s}, vcc\nv_add_f32 v{120+s}, v{120+s}, v{128+s}')
    for s in range(7):
        L += I(f'v_mfma_f32_16x16x4_f32 v[136:139], v{120+s}, v{72+s}, {"0" if s == 0 else "v[136:139]"}')
    L += I(f'''v_lshl_add_u32 v117, v14, 2, s59
    v_mad_u32_u24 v117, v117, 26, v13
    v_lshlrev_b32 v117, 2, v117
    v_mov_b32 v115, {DUMMY - MG}
    v_cmp_gt_u32 vcc, 26, v13
    v_cndmask_b32 v117, v115, v117, vcc''')
    for g in range(4): L += I(f'ds_write_b32 v117, v{136+g} offset:{MG + 104*g}')
    L += I('s_waitcnt lgkmcnt(0)\ns_barrier')
    for k in range(3):
        L += I(f'ds_read_b32 v{120+2*k}, v{84+2*k}\nds_read_b32 v{121+2*k}, v{85+2*k}')
    L += I('v_lshlrev_b32 v112, 1, v0')
    for k in range(3):
        L += I(f'v_add_f32 v{120+2*k}, v{120+2*k}, v{121+2*k}\nv_cvt_pk_bf16_f32 v{120+2*k}, v{120+2*k}, v{120+2*k}\nds_write_b16 v112, v{120+2*k} offset:{OUT + 512*k}')
    L += I(f'''s_waitcnt lgkmcnt(0)
    s_barrier
    ds_read_b128 v[8:11], v113 offset:{OUT}
    s_waitcnt lgkmcnt(0)
    L_prep_store:
    buffer_store_dwordx4 v[8:11], v3, s[32:35], 0 offen {pol}''')
    L += publish
    return L
```

```python
import sys
from common import *
from dnn import *
from prep import prep_code
TS = '--ts' in sys.argv
def stamp(i): return ts_stamp(i) if TS else []

def k1():
    XI = 16
    L = stamp(0)
    L += I('''s_load_dwordx16 s[4:19], s[0:1], 0
    s_load_dwordx2 s[24:25], s[0:1], 80
    s_cmp_ge_u32 s2, 256
    s_cbranch_scc1 L_k1_end
    s_and_b32 s41, s2, 7
    s_lshr_b32 s43, s2, 3
    s_cmp_ge_u32 s43, 26
    s_cbranch_scc1 L_helper
    s_mul_i32 s41, s41, 26
    s_add_u32 s41, s41, s43
    s_and_b32 s42, s41, 7
    s_lshr_b32 s41, s41, 3''')
    mid = srd(92, 14, 3328)
    mid += I('''v_and_b32 v8, 31, v1
    v_lshlrev_b32 v8, 1, v8
    v_mov_b32 v9, 0x7fffffff
    v_cmp_gt_u32 vcc, 32, v1
    v_cndmask_b32 v8, v9, v8, vcc
    s_lshl_b32 s60, s41, 7''')
    for r in list(range(88, 100)): mid += I(f'v_mov_b32 v{r}, 0')
    mid += I('''buffer_load_ushort v88, v8, s[92:95], s60 offen
    buffer_load_ushort v92, v8, s[92:95], s60 offen offset:64
    v_mov_b32 v9, 0x3f80
    v_cndmask_b32 v96, 0, v9, vcc
    s_mov_b32 s92, s16
    s_mov_b32 s93, s17
    v_lshrrev_b32 v8, 5, v1
    v_lshlrev_b32 v8, 3, v8''')
    for nb in range(2):
        for rq in range(4):
            mid += I(f'buffer_load_dwordx2 {vr(72 + 8*nb + 2*rq, 2)}, v8, s[92:95], s60 offen offset:{64*nb + 16*rq}')
    L += dnn_prologue(XI, mid)
    L += stamp(1)
    L += dnn_main(XI)
    L += stamp(2)
    for nb in range(2):
        L += I(f'v_mfma_f32_32x32x16_bf16 {acc(nb, 0)}, {vr(88 + 4*nb, 4)}, v[96:99], {acc(nb, 0)}')
    L += I('v_lshlrev_b32 v8, 4, v1')
    for mb in range(1, 4):
        L += I(f's_add_u32 s58, s40, {mb}\ns_and_b32 s58, s58, 3\ns_mul_i32 s58, s58, 24576\nv_add_u32 v{8+mb}, s58, v8')
    L += I('s_mul_i32 s58, s40, 24576\nv_add_u32 v8, s58, v8')
    L += I('s_waitcnt lgkmcnt(0)\ns_barrier')
    for mb in range(1, 4):
        for nb in range(2):
            for rq in range(4):
                L += I(f'ds_write_b128 v{8+mb}, {ar(ACC + 16*(mb*2+nb) + 4*rq, 4)} offset:{(mb-1)*8192 + (nb*4+rq)*1024}')
    for r in range(32): L += I(f'v_accvgpr_read_b32 v{100+r}, a{r}')
    L += I('s_waitcnt lgkmcnt(0)\ns_barrier')
    L += stamp(3)
    for sidx in range(3):
        for q in range(8):
            L += I(f'ds_read_b128 {vr(132 + 32*sidx + 4*q, 4)}, v8 offset:{sidx*8192 + q*1024}')
    for sidx in range(3):
        for r in range(32): L += I(f'v_add_f32 v{100+r}, v{100+r}, v{132+32*sidx+r}')
    L += I(f's_mov_b32 s60, {f2u(GELU_C1):#x}\nv_mov_b32 v9, {f2u(GELU_C0):#x}')
    for g in range(8):
        ch = [gelu(100 + 4*g + e, 132 + e, None, 's60', 9) for e in range(4)]
        for k in range(7):
            for e in range(4): L.append(ch[e][k])
        L += I(f'v_cvt_pk_bf16_f32 v{140+2*g}, v{100+4*g}, v{101+4*g}\nv_cvt_pk_bf16_f32 v{141+2*g}, v{102+4*g}, v{103+4*g}')
    for sg in range(4):
        L += I(f'v_mfma_f32_32x32x16_bf16 v[160:175], {vr(72 + 4*sg, 4)}, {vr(140 + 4*sg, 4)}, {"0" if sg == 0 else "v[160:175]"}')
    L += I(f'''s_add_u32 s28, s24, {WS_PART}
    s_addc_u32 s29, s25, 0
    s_mov_b32 s30, {1024*128}
    s_mov_b32 s31, 0x20000
    s_lshl_b32 s58, s42, 7
    s_lshl_b32 s59, s40, 5
    s_add_u32 s58, s58, s59
    s_lshl_b32 s58, s58, 7
    s_lshl_b32 s59, s41, 2
    s_add_u32 s58, s58, s59
    v_lshlrev_b32 v8, 7, v1
    v_mov_b32 v9, 0x7fffffff
    v_cmp_gt_u32 vcc, 32, v1
    v_cndmask_b32 v8, v9, v8, vcc
    buffer_store_dword v160, v8, s[28:31], s58 offen''')
    L += stamp(4)
    if TS: L += I('s_waitcnt vmcnt(0)') + stamp(5) + ts_out(6, 'L_ts1')
    L += I('s_endpgm\nL_helper:')
    L += I('''s_sub_u32 s40, s43, 26
    s_lshl_b32 s40, s40, 3
    s_add_u32 s40, s40, s41
    s_cmp_ge_u32 s40, 32
    s_cbranch_scc1 L_k1_end
    s_waitcnt lgkmcnt(0)''')
    pub = []
    if TS: pub = stamp(1) + stamp(2) + stamp(3) + stamp(4) + I('s_waitcnt vmcnt(0)') + stamp(5) + ts_out(6, 'L_ts2')
    L += prep_code(pub, pol='')
    L += I('L_k1_end:\ns_endpgm')
    return finalize(L, True)

def pgen(X, P, T):
    steps = []
    for s in range(24):
        L = []
        for jp in range(4):
            src = []
            for e in range(2):
                sl = slot(8 * s + 2 * jp + e)
                if sl[0] == 'mul':
                    t = T + (2 * jp + e) % 8
                    L += I(f'v_mul_f32 v{t}, v{X(sl[1])}, v{X(sl[2])}'); src.append(f'v{t}')
                elif sl[0] == 'lin': src.append(f'v{X(sl[1])}')
                elif sl[0] == 'one': src.append('1.0')
                else: src.append('0')
            L += I(f'v_cvt_pk_bf16_f32 v{P(s) + jp}, {src[0]}, {src[1]}')
        steps.append(L)
    return steps

def k2():
    XS = 47104
    L = stamp(0)
    L += I('''s_load_dwordx16 s[4:19], s[0:1], 0
    s_load_dwordx2 s[20:21], s[0:1], 64
    s_load_dwordx2 s[24:25], s[0:1], 80
    s_cmp_ge_u32 s2, 256
    s_cbranch_scc1 L_k2_end
    v_and_b32 v1, 63, v0
    v_lshrrev_b32 v8, 6, v0
    v_lshrrev_b32 v10, 3, v1
    v_readfirstlane_b32 s40, v8
    v_lshlrev_b32 v9, 4, v1
    s_lshl_b32 s41, s2, 2
    s_add_u32 s41, s41, s40
    s_mul_i32 s42, s41, 104''')
    for u in range(4):
        L += I(f'v_add_u32 v{12+u}, {8*u}, v10')
    L += I('v_cmp_gt_u32 vcc, 26, v15\nv_cndmask_b32 v15, 0, v15, vcc')
    for u in range(4): L += I(f'v_lshlrev_b32 v{12+u}, 2, v{12+u}')
    L += I('s_waitcnt lgkmcnt(0)')
    L += srd(28, 4, 106496) + srd(32, 6, 128000) + srd(36, 24, WS_PART + 1024 * 128)
    for u in range(4): L += I(f'buffer_load_dword v{12+u}, v{12+u}, s[28:31], s42 offen')
    L += I('s_mul_i32 s43, s40, 12288')
    for g in range(3):
        L += I(f's_add_u32 s44, s43, {4096*g}\ns_mov_b32 m0, s44')
        for u in range(4):
            if g == 2 and u >= 2:
                if u == 2: L += I('s_cmp_eq_u32 s40, 3\ns_cbranch_scc1 L_skipw')
            L += I(f'buffer_load_dwordx4 v9, s[36:39], s44 offen offset:{1024*u} lds', tag='cw')
    L += I('L_skipw:')
    L += I(f'''s_lshl_b32 s45, s41, 7
    s_add_u32 s45, s45, {WS_PART}
    v_lshlrev_b32 v2, 2, v1
    v_mov_b32 v3, 0x7fffffff
    v_cmp_gt_u32 vcc, 26, v1
    v_cndmask_b32 v2, v3, v2, vcc
    buffer_load_dword v4, v2, s[36:39], s45 offen
    s_load_dword s46, s[18:19], 0
    v_and_b32 v11, 7, v1
    v_lshlrev_b32 v11, 4, v11
    s_lshl_b32 s44, s40, 12
    s_add_u32 s44, s44, {XS}
    s_mov_b32 m0, s44
    s_waitcnt vmcnt(11)''')
    for u in range(4):
        L += I(f'v_lshl_add_u32 v{12+u}, v{12+u}, 7, v11')
        if u: L += I(f'v_subrev_u32 v{12+u}, {1024*u}, v{12+u}')
    L += stamp(1)
    for u in range(4):
        L += I(f's_add_u32 m0, s44, {1024*u}')
        if u: L += I(f'v_add_u32 v{12+u}, {1024*u}, v{12+u}')
        L += I(f'buffer_load_dwordx4 v{12+u}, s[32:35], 0 offen lds', tag='xr')
    L += I('''v_and_b32 v5, 31, v1
    v_lshlrev_b32 v5, 2, v5
    v_lshrrev_b32 v6, 5, v1
    v_lshl_add_u32 v5, v6, 7, v5
    v_add_u32 v5, s44, v5
    s_waitcnt vmcnt(0)
    s_barrier''')
    L += stamp(2)
    XE, XO = 16, 42
    for i in range(26): L += I(f'ds_read_b32 v{XO+i}, v5 offset:{128*i}')
    for i in range(26): L += I(f'v_lshlrev_b32 v{XE+i}, 16, v{XO+i}\nv_and_b32 v{XO+i}, 0xffff0000, v{XO+i}')
    PE = lambda s: 68 + 8 * (s & 1)
    PO = lambda s: 72 + 8 * (s & 1)
    pe = pgen(lambda i: XE + i, PE, 84); po = pgen(lambda i: XO + i, PO, 92)
    AF = lambda s, m: 100 + 8 * (s & 1) + 4 * m
    AC = lambda m, cb: vr(128 + 16 * (2 * m + cb), 16)
    def rd(s):
        return [x for m in range(2) if (m == 1 or s < 22) for x in I(f'ds_read_b128 {vr(AF(s, m), 4)}, v9 offset:{fragidx(s, m)*1024}')]
    L += rd(0) + pe[0] + po[0]
    for s in range(24):
        mf = []
        for m in range(2):
            if m == 0 and s >= 22: continue
            for cb in range(2):
                p = PE(s) if cb == 0 else PO(s)
                mf += I(f'v_mfma_f32_32x32x16_bf16 {AC(m, cb)}, {vr(AF(s, m), 4)}, {vr(p, 4)}, {"0" if s == 0 else AC(m, cb)}')
        side = (rd(s + 1) + pe[s + 1] + po[s + 1]) if s < 23 else []
        L += interleave(mf, side, per=len(side) / len(mf) + 0.01)
    L += stamp(3)
    L += I('s_waitcnt lgkmcnt(0)\ns_lshl_b32 s46, s46, 16\nv_mov_b32 v2, s46\nv_cmp_eq_u32 vcc, 63, v1\nv_cndmask_b32 v2, 0, v2, vcc\nv_add_f32 v4, v4, v2\nv_mov_b32 v2, 0')
    for r in range(16):
        L += I(f'v_fmac_f32 v4, v{128+r}, v{160+r}\nv_fmac_f32 v2, v{144+r}, v{176+r}')
    L += I('v_add_f32 v4, v4, v2')
    for sh in (1, 2, 4, 8):
        L += I(f'v_add_f32_dpp v4, v4, v4 row_shr:{sh} row_mask:0xf bank_mask:0xf bound_ctrl:1')
    L += I('v_add_f32_dpp v4, v4, v4 row_bcast:15 row_mask:0xa bank_mask:0xf')
    L += I('v_add_f32_dpp v4, v4, v4 row_bcast:31 row_mask:0xc bank_mask:0xf')
    L += srd(28, 20, 2048)
    L += I('''v_cvt_pk_bf16_f32 v4, v4, v4
    v_cndmask_b32 v3, v3, 0, vcc
    s_lshl_b32 s41, s41, 1
    buffer_store_short v4, v3, s[28:31], s41 offen''')
    L += stamp(4)
    if TS: L += I('s_waitcnt vmcnt(0)') + stamp(5) + ts_out(6, 'L_ts3', base=(1 << 24) + 256 * 48)
    L += I('L_k2_end:\ns_endpgm')
    return finalize(L, True)

n1, n2 = KN + '_a_kernel', KN + '_b_kernel'
txt = HDR_COMMENT + f'; @launch kernel={n1} grid=(256,1,1) block=(256,1,1) lds=163840\n; @launch kernel={n2} grid=(256,1,1) block=(256,1,1) lds=65536\n'
txt += '.amdgcn_target "amdgcn-amd-amdhsa--gfx950"\n.text\n'
txt += kstart(n1) + k1() + '\n' + kstart(n2) + k2() + '\n.section .rodata,"a"\n' + kd(n1, 512, 256) + kd(n2, 256, 256)
out = [a for a in sys.argv[1:] if not a.startswith('--')][0]
open(out, 'w').write(txt)
```

```python
from ir import *
KN = 'standalone__deep_cross_xdeepfm__recsys'
HDR_COMMENT = open('standalone__deep_cross_xdeepfm__recsys.s.ref').read().split('; Override launch')[0]

def kd(name, nv, acc, ns=100):
    return f'''.p2align 6
.amdhsa_kernel {name}
  .amdhsa_next_free_vgpr {nv}
  .amdhsa_next_free_sgpr {ns}
  .amdhsa_accum_offset {acc}
  .amdhsa_group_segment_fixed_size 0
  .amdhsa_kernarg_size 88
  .amdhsa_user_sgpr_count 2
  .amdhsa_user_sgpr_kernarg_segment_ptr 1
  .amdhsa_system_sgpr_workgroup_id_x 1
.end_amdhsa_kernel
'''
def kstart(name):
    return f'''.globl {name}
.p2align 8
.type {name},@function
{name}:
'''
def srd(d, base, nbytes):
    return I(f's_mov_b32 s{d}, s{base}\ns_mov_b32 s{d+1}, s{base+1}\ns_mov_b32 s{d+2}, {nbytes}\ns_mov_b32 s{d+3}, 0x20000')

def vr(b, n): return f'v[{b}:{b+n-1}]' if n > 1 else f'v{b}'
def ar(b, n): return f'a[{b}:{b+n-1}]' if n > 1 else f'a{b}'

def slot(t):
    if t < 176:
        d = t // 13; i = 2 * (t % 13)
        return ('mul', i, (i + d) % 26)
    t2 = t - 176
    if t2 < 13: return ('lin', 2 * t2)
    if t2 == 13: return ('one',)
    return ('zero',)
NFRAG = 46
def fragidx(s, mat):
    if s < 22: return 2 * s + mat
    assert mat == 1
    return 44 + (s - 22)
WS_CW = 0
WS_PART = 65536
GELU_C0 = -2.0 * 0.7978845608028654 * 1.4426950408889634
GELU_C1 = GELU_C0 * 0.044715
import struct
def f2u(x): return struct.unpack('<I', struct.pack('<f', x))[0]

import os
def ts_stamp(i, first=64):
    if os.environ.get('CYC'): return I(f's_memtime s[{first+2*i}:{first+2*i+1}]')
    return I(f's_memrealtime s[{first+2*i}:{first+2*i+1}]')
def ts_out(n, lbl, wsreg=24, first=64, slot_expr='s2', base=1<<24, vt=8):
    L = I(f'''s_waitcnt lgkmcnt(0)
    s_mul_i32 s3, {slot_expr}, {8*n}
    s_add_u32 s{wsreg}, s{wsreg}, s3
    s_addc_u32 s{wsreg+1}, s{wsreg+1}, 0
    s_add_u32 s{wsreg}, s{wsreg}, {base}
    s_addc_u32 s{wsreg+1}, s{wsreg+1}, 0
    v_mov_b32 v1, 0
    v_cmp_eq_u32 vcc, 0, v0
    s_and_saveexec_b64 s[26:27], vcc
    s_cbranch_execz {lbl}''')
    for i in range(n):
        L += I(f'v_mov_b32 v{vt}, s{first+2*i}\nv_mov_b32 v{vt+1}, s{first+2*i+1}\nglobal_store_dwordx2 v1, v[{vt}:{vt+1}], s[{wsreg}:{wsreg+1}] offset:{8*i}\ns_nop 1')
    L += I(f'{lbl}:')
    return L

def dbg_out(items, lbl, back=0, first=64):
    L = I(f'''s_load_dwordx2 s[20:21], s[0:1], 72
    s_waitcnt lgkmcnt(0)
    s_sub_u32 s20, s20, {back}
    s_subb_u32 s21, s21, 0
    v_mov_b32 v1, 0
    v_cmp_eq_u32 vcc, 0, v0
    s_and_saveexec_b64 s[26:27], vcc
    s_cbranch_execz {lbl}''')
    for di, si, neg in items:
        L += I(f'v_mov_b32 v8, s{first+2*si}')
        if neg: L += I('v_not_b32 v8, v8')
        L += I(f'global_atomic_umax v1, v8, s[20:21] offset:{4*di}\ns_nop 1')
    L += I(f'{lbl}:')
    return L
```

```python
import sys
from common import *
from dnn import *
from prep import prep_code
DBG = '--dbg' in sys.argv
TS = '--ts' in sys.argv or DBG
def stamp(i): return ts_stamp(i) if TS else []

def k1():
    XI = 16
    L = stamp(0)
    L += I('''s_load_dwordx16 s[4:19], s[0:1], 0
    s_load_dwordx2 s[24:25], s[0:1], 80
    s_cmp_ge_u32 s2, 256
    s_cbranch_scc1 L_k1_end
    s_and_b32 s41, s2, 7
    s_lshr_b32 s43, s2, 3
    s_cmp_ge_u32 s43, 26
    s_cbranch_scc1 L_helper
    s_mul_i32 s41, s41, 26
    s_add_u32 s41, s41, s43
    s_and_b32 s42, s41, 7
    s_lshr_b32 s41, s41, 3''')
    mid = srd(92, 14, 3328)
    mid += I('''v_and_b32 v8, 31, v1
    v_lshlrev_b32 v8, 1, v8
    v_mov_b32 v9, 0x7fffffff
    v_cmp_gt_u32 vcc, 32, v1
    v_cndmask_b32 v8, v9, v8, vcc
    s_lshl_b32 s60, s41, 7''')
    for r in list(range(88, 100)): mid += I(f'v_mov_b32 v{r}, 0')
    mid += I('''buffer_load_ushort v88, v8, s[92:95], s60 offen
    buffer_load_ushort v92, v8, s[92:95], s60 offen offset:64
    v_mov_b32 v9, 0x3f80
    v_cndmask_b32 v96, 0, v9, vcc
    s_mov_b32 s92, s16
    s_mov_b32 s93, s17
    v_lshrrev_b32 v8, 5, v1
    v_lshlrev_b32 v8, 3, v8''')
    for nb in range(2):
        for rq in range(4):
            mid += I(f'buffer_load_dwordx2 {vr(72 + 8*nb + 2*rq, 2)}, v8, s[92:95], s60 offen offset:{64*nb + 16*rq}')
    L += dnn_prologue(XI, mid)
    L += stamp(1)
    L += dnn_main(XI)
    L += stamp(2)
    for nb in range(2):
        L += I(f'v_mfma_f32_32x32x16_bf16 {acc(nb, 0)}, {vr(88 + 4*nb, 4)}, v[96:99], {acc(nb, 0)}')
    L += I('v_lshlrev_b32 v8, 4, v1')
    for mb in range(1, 4):
        L += I(f's_add_u32 s58, s40, {mb}\ns_and_b32 s58, s58, 3\ns_mul_i32 s58, s58, 24576\nv_add_u32 v{8+mb}, s58, v8')
    L += I('s_mul_i32 s58, s40, 24576\nv_add_u32 v8, s58, v8')
    L += I('s_waitcnt lgkmcnt(0)\ns_barrier')
    for mb in range(1, 4):
        for nb in range(2):
            for rq in range(4):
                L += I(f'ds_write_b128 v{8+mb}, {ar(ACC + 16*(mb*2+nb) + 4*rq, 4)} offset:{(mb-1)*8192 + (nb*4+rq)*1024}')
    for r in range(32): L += I(f'v_accvgpr_read_b32 v{100+r}, a{r}')
    L += I('s_waitcnt lgkmcnt(0)\ns_barrier')
    L += stamp(3)
    for sidx in range(3):
        for q in range(8):
            L += I(f'ds_read_b128 {vr(132 + 32*sidx + 4*q, 4)}, v8 offset:{sidx*8192 + q*1024}')
    for sidx in range(3):
        for r in range(32): L += I(f'v_add_f32 v{100+r}, v{100+r}, v{132+32*sidx+r}')
    L += I(f's_mov_b32 s60, {f2u(GELU_C1):#x}\nv_mov_b32 v9, {f2u(GELU_C0):#x}')
    for g in range(8):
        ch = [gelu(100 + 4*g + e, 132 + e, None, 's60', 9) for e in range(4)]
        for k in range(7):
            for e in range(4): L.append(ch[e][k])
        L += I(f'v_cvt_pk_bf16_f32 v{140+2*g}, v{100+4*g}, v{101+4*g}\nv_cvt_pk_bf16_f32 v{141+2*g}, v{102+4*g}, v{103+4*g}')
    for sg in range(4):
        L += I(f'v_mfma_f32_32x32x16_bf16 v[160:175], {vr(72 + 4*sg, 4)}, {vr(140 + 4*sg, 4)}, {"0" if sg == 0 else "v[160:175]"}')
    L += I(f'''s_add_u32 s28, s24, {WS_PART}
    s_addc_u32 s29, s25, 0
    s_mov_b32 s30, {1024*128}
    s_mov_b32 s31, 0x20000
    s_lshl_b32 s58, s42, 7
    s_lshl_b32 s59, s40, 5
    s_add_u32 s58, s58, s59
    s_lshl_b32 s58, s58, 7
    s_lshl_b32 s59, s41, 2
    s_add_u32 s58, s58, s59
    v_lshlrev_b32 v8, 7, v1
    v_mov_b32 v9, 0x7fffffff
    v_cmp_gt_u32 vcc, 32, v1
    v_cndmask_b32 v8, v9, v8, vcc
    buffer_store_dword v160, v8, s[28:31], s58 offen''')
    L += stamp(4)
    if TS: L += I('s_waitcnt vmcnt(0)') + stamp(5) + (dbg_out([(0,0,1),(6,0,0),(1,1,0),(2,2,0),(3,3,0),(4,4,0),(5,5,0)], 'L_ts1') if DBG else ts_out(6, 'L_ts1'))
    L += I('s_endpgm\nL_helper:')
    L += I('''s_sub_u32 s40, s43, 26
    s_lshl_b32 s40, s40, 3
    s_add_u32 s40, s40, s41
    s_cmp_ge_u32 s40, 32
    s_cbranch_scc1 L_k1_end
    s_waitcnt lgkmcnt(0)''')
    pub = []
    if TS: pub = stamp(1) + stamp(2) + stamp(3) + stamp(4) + I('s_waitcnt vmcnt(0)') + stamp(5) + (dbg_out([(7,5,0)], 'L_ts2') if DBG else ts_out(6, 'L_ts2'))
    L += prep_code(pub, pol='')
    L += I('L_k1_end:\ns_endpgm')
    return finalize(L, True)

def pgen(X, P, T):
    steps = []
    for s in range(24):
        L = []
        for jp in range(4):
            src = []
            for e in range(2):
                sl = slot(8 * s + 2 * jp + e)
                if sl[0] == 'mul':
                    t = T + (2 * jp + e) % 8
                    L += I(f'v_mul_f32 v{t}, v{X(sl[1])}, v{X(sl[2])}'); src.append(f'v{t}')
                elif sl[0] == 'lin': src.append(f'v{X(sl[1])}')
                elif sl[0] == 'one': src.append('1.0')
                else: src.append('0')
            L += I(f'v_cvt_pk_bf16_f32 v{P(s) + jp}, {src[0]}, {src[1]}')
        steps.append(L)
    return steps

def k2():
    XS = 47104
    L = stamp(0)
    L += I('''s_load_dwordx16 s[4:19], s[0:1], 0
    s_load_dwordx2 s[20:21], s[0:1], 64
    s_load_dwordx2 s[24:25], s[0:1], 80
    s_cmp_ge_u32 s2, 256
    s_cbranch_scc1 L_k2_end
    v_and_b32 v1, 63, v0
    v_lshrrev_b32 v8, 6, v0
    v_lshrrev_b32 v10, 3, v1
    v_readfirstlane_b32 s40, v8
    v_lshlrev_b32 v9, 4, v1
    s_lshl_b32 s41, s2, 2
    s_add_u32 s41, s41, s40
    s_mul_i32 s42, s41, 104''')
    for u in range(4):
        L += I(f'v_add_u32 v{12+u}, {8*u}, v10')
    L += I('v_cmp_gt_u32 vcc, 26, v15\nv_cndmask_b32 v15, 0, v15, vcc')
    for u in range(4): L += I(f'v_lshlrev_b32 v{12+u}, 2, v{12+u}')
    L += I('s_waitcnt lgkmcnt(0)')
    L += srd(28, 4, 106496) + srd(32, 6, 128000) + srd(36, 24, WS_PART + 1024 * 128)
    for u in range(4): L += I(f'buffer_load_dword v{12+u}, v{12+u}, s[28:31], s42 offen')
    L += I('s_mul_i32 s43, s40, 12288')
    for g in range(3):
        L += I(f's_add_u32 s44, s43, {4096*g}\ns_mov_b32 m0, s44')
        for u in range(4):
            if g == 2 and u >= 2:
                if u == 2: L += I('s_cmp_eq_u32 s40, 3\ns_cbranch_scc1 L_skipw')
            L += I(f'buffer_load_dwordx4 v9, s[36:39], s44 offen offset:{1024*u} lds', tag='cw')
    L += I('L_skipw:')
    L += I(f'''s_lshl_b32 s45, s41, 7
    s_add_u32 s45, s45, {WS_PART}
    v_lshlrev_b32 v2, 2, v1
    v_mov_b32 v3, 0x7fffffff
    v_cmp_gt_u32 vcc, 26, v1
    v_cndmask_b32 v2, v3, v2, vcc
    buffer_load_dword v4, v2, s[36:39], s45 offen
    s_load_dword s46, s[18:19], 0
    v_and_b32 v11, 7, v1
    v_lshlrev_b32 v11, 4, v11
    s_lshl_b32 s44, s40, 12
    s_add_u32 s44, s44, {XS}
    s_mov_b32 m0, s44
    s_waitcnt vmcnt(11)''')
    for u in range(4):
        L += I(f'v_lshl_add_u32 v{12+u}, v{12+u}, 7, v11')
        if u: L += I(f'v_subrev_u32 v{12+u}, {1024*u}, v{12+u}')
    L += stamp(1)
    for u in range(4):
        L += I(f's_add_u32 m0, s44, {1024*u}')
        if u: L += I(f'v_add_u32 v{12+u}, {1024*u}, v{12+u}')
        L += I(f'buffer_load_dwordx4 v{12+u}, s[32:35], 0 offen lds', tag='xr')
    L += I('''v_and_b32 v5, 31, v1
    v_lshlrev_b32 v5, 2, v5
    v_lshrrev_b32 v6, 5, v1
    v_lshl_add_u32 v5, v6, 7, v5
    v_add_u32 v5, s44, v5
    s_waitcnt vmcnt(0)
    s_barrier''')
    L += stamp(2)
    XE, XO = 16, 42
    for i in range(26): L += I(f'ds_read_b32 v{XO+i}, v5 offset:{128*i}')
    for i in range(26): L += I(f'v_lshlrev_b32 v{XE+i}, 16, v{XO+i}\nv_and_b32 v{XO+i}, 0xffff0000, v{XO+i}')
    PE = lambda s: 68 + 8 * (s & 1)
    PO = lambda s: 72 + 8 * (s & 1)
    pe = pgen(lambda i: XE + i, PE, 84); po = pgen(lambda i: XO + i, PO, 92)
    AF = lambda s, m: 100 + 8 * (s & 1) + 4 * m
    AC = lambda m, cb: vr(128 + 16 * (2 * m + cb), 16)
    def rd(s):
        return [x for m in range(2) if (m == 1 or s < 22) for x in I(f'ds_read_b128 {vr(AF(s, m), 4)}, v9 offset:{fragidx(s, m)*1024}')]
    L += rd(0) + pe[0] + po[0]
    for s in range(24):
        mf = []
        for m in range(2):
            if m == 0 and s >= 22: continue
            for cb in range(2):
                p = PE(s) if cb == 0 else PO(s)
                mf += I(f'v_mfma_f32_32x32x16_bf16 {AC(m, cb)}, {vr(AF(s, m), 4)}, {vr(p, 4)}, {"0" if s == 0 else AC(m, cb)}')
        side = (rd(s + 1) + pe[s + 1] + po[s + 1]) if s < 23 else []
        L += interleave(mf, side, per=len(side) / len(mf) + 0.01)
    L += stamp(3)
    L += I('s_waitcnt lgkmcnt(0)\ns_lshl_b32 s46, s46, 16\nv_mov_b32 v2, s46\nv_cmp_eq_u32 vcc, 63, v1\nv_cndmask_b32 v2, 0, v2, vcc\nv_add_f32 v4, v4, v2\nv_mov_b32 v2, 0')
    for r in range(16):
        L += I(f'v_fmac_f32 v4, v{128+r}, v{160+r}\nv_fmac_f32 v2, v{144+r}, v{176+r}')
    L += I('v_add_f32 v4, v4, v2')
    for sh in (1, 2, 4, 8):
        L += I(f'v_add_f32_dpp v4, v4, v4 row_shr:{sh} row_mask:0xf bank_mask:0xf bound_ctrl:1')
    L += I('v_add_f32_dpp v4, v4, v4 row_bcast:15 row_mask:0xa bank_mask:0xf')
    L += I('v_add_f32_dpp v4, v4, v4 row_bcast:31 row_mask:0xc bank_mask:0xf')
    L += srd(28, 20, 2048)
    L += I('''v_cvt_pk_bf16_f32 v4, v4, v4
    v_cndmask_b32 v3, v3, 0, vcc
    s_lshl_b32 s41, s41, 1
    buffer_store_short v4, v3, s[28:31], s41 offen''')
    L += stamp(4)
    if TS: L += I('s_waitcnt vmcnt(0)') + stamp(5) + (dbg_out([(8,0,1),(9,0,0),(10,1,0),(11,2,0),(12,3,0),(13,4,0),(14,5,0)], 'L_ts3', back=512) if DBG else ts_out(6, 'L_ts3', base=(1 << 24) + 256 * 48))
    L += I('L_k2_end:\ns_endpgm')
    return finalize(L, True)

n1, n2 = KN + '_a_kernel', KN + '_b_kernel'
txt = HDR_COMMENT + f'; @launch kernel={n1} grid=(256,1,1) block=(256,1,1) lds=163840\n; @launch kernel={n2} grid=(256,1,1) block=(256,1,1) lds=65536\n'
txt += '.amdgcn_target "amdgcn-amd-amdhsa--gfx950"\n.text\n'
txt += kstart(n1) + k1() + '\n' + kstart(n2) + k2() + '\n.section .rodata,"a"\n' + kd(n1, 512, 256) + kd(n2, 256, 256)
out = [a for a in sys.argv[1:] if not a.startswith('--')][0]
open(out, 'w').write(txt)
```

```python
import re

REG = re.compile(r'(?<![\w.])([vas])(\d+)\b|(?<![\w.])([vas])\[(\d+):(\d+)\]|\b(vcc|exec|m0)(?:_lo|_hi)?\b')

def regs_of(tok):
    out = []
    for m in REG.finditer(tok):
        if m.group(1): out.append(m.group(1) + m.group(2))
        elif m.group(3): out += [m.group(3) + str(i) for i in range(int(m.group(4)), int(m.group(5)) + 1)]
        else: out.append(m.group(6))
    return out

TRANS = ('v_exp_f32', 'v_log_f32', 'v_rcp_f32', 'v_rsq_f32', 'v_sqrt_f32', 'v_sin_f32', 'v_cos_f32')

class Ins:
    __slots__ = ('text', 'op', 'defs', 'uses', 'kind', 'tag', 'ops', 'passes', 'srcc', 'wide', 'arg', 'after')
    def __init__(self, text, tag=None):
        self.text = text; self.tag = tag; self.passes = 0; self.srcc = (); self.wide = (); self.arg = None; self.after = None
        t = text.split(';')[0].strip()
        if t.endswith(':'):
            self.op = 'label'; self.kind = 'label'; self.defs = set(); self.uses = set(); return
        if t.startswith('.'):
            self.op = 'dir'; self.kind = 'dir'; self.defs = set(); self.uses = set(); return
        p = t.split(None, 1); op = p[0]; self.op = op
        rest = p[1] if len(p) > 1 else ''
        ops = [x.strip() for x in re.split(r',\s*(?![^\[]*\])', rest)] if rest else []
        self.ops = ops
        R = [regs_of(x) for x in ops]
        allr = [r for x in R for r in x]
        d, u = [], []
        if op.startswith('v_mfma'):
            k = 'mfma'; d = R[0]; u = R[1] + R[2] + R[3]; self.srcc = tuple(R[3])
            if '32x32x16' in op: self.passes = 8
            elif '16x16x32' in op: self.passes = 4
            elif '16x16x4_f32' in op: self.passes = 108
            elif '32x32x2_f32' in op: self.passes = 116
            else: raise ValueError(op)
        elif op.startswith('ds_read') or op.startswith('ds_bpermute') or op.startswith('ds_swizzle') or (op.startswith('ds_') and '_rtn' in op):
            k = 'ds'; d = R[0]; u = [r for x in R[1:] for r in x]
            if 'd16' in op: u += R[0]
        elif op.startswith('ds_'):
            k = 'ds'; u = allr
        elif op.startswith('buffer_load') or op.startswith('global_load'):
            k = 'vm'
            if re.search(r'\blds\b', t) or '_lds_' in op:
                u = allr + ['m0']; k = 'vm'; self.arg = 'dma'
            else:
                d = R[0]; u = [r for x in R[1:] for r in x]
                if 'd16' in op: u += R[0]
        elif op.startswith('buffer_store') or op.startswith('global_store'):
            k = 'vm'; u = allr
            if 'x3' in op or 'x4' in op: self.wide = tuple(R[0] if op.startswith('buffer') else R[1])
        elif op.startswith('buffer_atomic') or op.startswith('global_atomic'):
            k = 'vm'; u = allr
            if re.search(r'\bsc0\b', t): d = R[0]
        elif op in ('buffer_inv', 'buffer_wbl2'):
            k = 'vm'
        elif op.startswith('s_load') or op.startswith('s_buffer_load') or op in ('s_memtime', 's_memrealtime'):
            k = 'smem'; d = R[0]; u = [r for x in R[1:] for r in x]
        elif op == 's_waitcnt': k = 'wait'
        elif op == 's_nop': k = 'nop'; self.arg = int(ops[0], 0)
        elif op in ('s_barrier', 's_endpgm', 's_sleep', 's_setprio'): k = 'sctl'
        elif op.startswith('s_branch') or op.startswith('s_cbranch'):
            k = 'branch'
        elif op.startswith('s_cmp') or op.startswith('s_bitcmp'): k = 'salu'; u = allr
        elif op.startswith('s_'):
            k = 'salu'; d = R[0]; u = [r for x in R[1:] for r in x]
            if 'saveexec' in op: d = d + ['exec']; u = u + ['exec']
        elif op.startswith('v_'):
            k = 'valu'; d = list(R[0]); u = [r for x in R[1:] for r in x]
            if op.startswith('v_cmpx'): d += ['exec']
            if op.startswith(('v_fmac', 'v_mac', 'v_permlane', 'v_writelane', 'v_dot2c')): u += R[0]
            if op.startswith('v_permlane') and 'swap' in op: d += R[1]
            if op.startswith(('v_add_co', 'v_sub_co', 'v_addc_co', 'v_subb_co')): d += R[1]
            if 'dpp' in op or 'row_' in t or 'quad_perm' in t: self.arg = 'dpp'; u += R[0]
            if 'sdwa' in op: self.arg = 'sdwa'
            if op in TRANS or op.replace('_e32', '').replace('_e64', '') in TRANS: k = 'trans'
        else:
            raise ValueError('unknown op: ' + text)
        self.kind = k; self.defs = set(d); self.uses = set(u)

class WaitTag:
    def __init__(self, tags): self.tags = set(tags if isinstance(tags, (list, tuple, set)) else [tags])

def I(text, tag=None):
    out = []
    for line in text.split('\n'):
        line = line.strip()
        if line and not line.startswith(';'): out.append(Ins(line, tag))
    return out

def isvalu(x): return x.kind in ('valu', 'trans')

def need_states(p, c):
    n = 0
    vd = {r for r in p.defs if r[0] in 'va' and r not in ('vcc',)}
    sd = {r for r in p.defs if r[0] == 's' or r == 'vcc'}
    if isvalu(p):
        if c.kind == 'mfma' and vd & c.uses: n = max(n, 2)
        if c.kind == 'vm' and sd & c.uses: n = max(n, 5)
        if isvalu(c) and sd & c.uses: n = max(n, 4 if c.op.startswith(('v_readlane', 'v_writelane')) else 2)
        if c.kind in ('salu', 'smem') and sd & c.uses: n = max(n, 1)
        if isvalu(c) and c.op.startswith(('v_readlane', 'v_readfirstlane')) and vd & c.uses: n = max(n, 1)
        if isvalu(c) and c.op.startswith('v_permlane') and vd & c.uses: n = max(n, 2)
        if isvalu(c) and c.arg == 'dpp' and vd & c.uses: n = max(n, 2)
        if p.kind == 'trans' and c.kind == 'valu' and vd & c.uses: n = max(n, 1)
        if p.kind == 'trans' and c.kind in ('ds', 'vm') and vd & c.uses: n = max(n, 1)
        if p.arg == 'sdwa' and isvalu(c) and vd & (c.uses | c.defs): n = max(n, 1)
        if 'exec' in p.defs:
            if c.kind == 'mfma': n = max(n, 4)
            if isvalu(c): n = max(n, 5 if c.arg == 'dpp' else 4 if c.op.startswith(('v_readlane', 'v_readfirstlane', 'v_writelane', 'v_permlane')) else 2 if 'exec' in c.uses else 0)
    if p.kind == 'salu' and 'm0' in p.defs and c.kind == 'vm' and c.arg == 'dma': n = max(n, 1)
    if p.kind == 'vm' and p.wide and (set(p.wide) & c.defs): n = max(n, 2)
    if p.kind == 'mfma':
        sg = p.passes > 100; ps = p.passes % 100
        big = {4: 8, 8: 12, 16: 20}[ps] - (2 if sg else 0)
        if c.kind == 'mfma':
            ab = set(regs_of(c.ops[1]) + regs_of(c.ops[2]))
            if p.defs & ab: n = max(n, big)
            if p.defs & set(c.srcc):
                same = (c.ops[3] == p.ops[0] and c.passes == p.passes)
                if not same: n = max(n, {4: 6, 8: 10, 16: 18}[ps])
            elif p.defs & c.defs: n = max(n, big)
        elif c.kind in ('valu', 'trans', 'ds', 'vm'):
            if p.defs & (c.uses | c.defs): n = max(n, big)
            if isvalu(c) and not sg and set(p.srcc) & c.defs: n = max(n, {4: 3, 8: 7, 16: 15}[ps])
    return n

def finalize(prog, verbose=False):
    out = []
    hist = []
    vm = []; lg = []
    stats = {'nops': 0, 'waits': 0}
    def emit(x):
        out.append(x)
        if x.kind in ('label', 'dir'): return
        hist.append(x)
        if len(hist) > 40: hist.pop(0)
    def do_wait(nv, nl):
        parts = []
        if nv is not None and nv < len(vm):
            nv = min(nv, 63); parts.append(f'vmcnt({nv})'); del vm[:len(vm) - nv]
        if nl is not None and nl < len(lg):
            if any(x.kind == 'smem' for x in lg): nl = 0
            nl = min(nl, 15); parts.append(f'lgkmcnt({nl})'); del lg[:len(lg) - nl]
        if parts:
            emit(Ins('s_waitcnt ' + ' '.join(parts))); stats['waits'] += 1
    for x in prog:
        if isinstance(x, WaitTag):
            nv = nl = None
            for i, p in enumerate(vm):
                if p.tag in x.tags: nv = len(vm) - 1 - i
            for i, p in enumerate(lg):
                if p.tag in x.tags: nl = len(lg) - 1 - i
            do_wait(nv, nl); continue
        if x.kind in ('label', 'dir'):
            emit(x); continue
        if x.kind == 'wait':
            m = re.search(r'vmcnt\((\d+)\)', x.text)
            if m: n = int(m.group(1)); del vm[:max(0, len(vm) - n)]
            m = re.search(r'lgkmcnt\((\d+)\)', x.text)
            if m:
                n = int(m.group(1))
                if n == 0 or not any(p.kind == 'smem' for p in lg): del lg[:max(0, len(lg) - n)]
            emit(x); continue
        touch = x.uses | x.defs
        nv = nl = None
        for i, p in enumerate(vm):
            if p.defs & touch: nv = len(vm) - 1 - i
        for i, p in enumerate(lg):
            if p.defs & touch: nl = len(lg) - 1 - i
        do_wait(nv, nl)
        dist = 0; need = 0
        for p in reversed(hist):
            n = need_states(p, x)
            if n - dist > need: need = n - dist
            dist += (p.arg + 1) if p.kind == 'nop' else 1
            if dist > 24: break
        while need > 0:
            k = min(need, 16); emit(Ins(f's_nop {k-1}')); need -= k; stats['nops'] += 1
        emit(x)
        if x.kind == 'vm': vm.append(x)
        if x.kind in ('ds', 'smem'): lg.append(x)
    lines = []
    for x in out:
        lines.append(x.text if x.kind in ('label', 'dir') else '    ' + x.text)
    if verbose: print(stats)
    return '\n'.join(lines)

def interleave(main, filler, pattern=None, per=1, key=lambda x: getattr(x, 'kind', None) == 'mfma'):
    out = []; fi = 0; acc = 0.0
    for x in main:
        out.append(x)
        if key(x):
            acc += per
            while acc >= 1 and fi < len(filler):
                out.append(filler[fi]);
                if not isinstance(filler[fi], WaitTag): acc -= 1
                fi += 1
    out += filler[fi:]
    return out


def check_locked(prog, is_def, is_use, nuses):
    last_use = {}
    for i, x in enumerate(prog):
        if isinstance(x, Ins) and is_use(x):
            for r in regs_of(x.ops[2]): last_use[r] = i
    first_def = {}
    for i, x in enumerate(prog):
        if isinstance(x, Ins) and is_def(x):
            for r in x.defs:
                if r in last_use: first_def[r] = i
    for i, x in enumerate(prog):
        if isinstance(x, Ins) and not is_def(x):
            for r in x.defs:
                if r in first_def and first_def[r] < i < last_use[r]:
                    raise AssertionError(f'locked reg {r} clobbered by {x.text}')
    missing = set(last_use) - set(first_def)
    assert not missing, missing
```

```python
import sys, os
from common import *
from prep import prep_code
ARGS = sys.argv[1:]
TS = '--ts' in ARGS; DBG = '--dbg' in ARGS
def opt(name, default):
    for a in ARGS:
        if a.startswith(f'--{name}='): return type(default)(a.split('=')[1])
    return default
def stamp(i): return ts_stamp(i) if (TS or DBG) else []
NST = 10
RING = 131072; IDXS = RING + 16384; CWB = 98304
WS_EPOCH = 61440
WS_PART = 65536
PART_BYTES = 1024 * 256
DBG_CNT = 128
OOB = 0x7fffffff
XE = lambda i: 16 + i
XO = lambda i: 42 + i
CA = lambda m, cb: vr(16 + 16 * (2 * m + cb), 16)
OWN = 80
PT = 68
XI = lambda fs, mb: 228 + 4 * fs + mb
def Pfrag(s, cb):
    return vr(112 + 8 * s + 4 * cb, 4) if s < 18 else ar(172 + 8 * (s - 18) + 4 * cb, 4)
def acc(nb, mb): return vr(OWN + 16 * nb, 16) if mb == 0 else ar(32 * (mb - 1) + 16 * nb, 16)
WF = lambda buf, nb, q=None: ar(96 + 8 * buf + 4 * nb, 4) if q is None else ar(96 + 8 * buf + 4 * nb + 2 * q, 2)
XF = lambda buf, mb: ar(112 + 16 * buf + 4 * mb, 4)
BIAS, ONE, W2 = 144, 152, 156
AFR = lambda s, m: ar(96 + 8 * (s % 6) + 4 * m, 4)

def merge(D, C, ratio):
    out = []; i = j = 0
    while i < len(D) or j < len(C):
        if i < len(D) and D[i] != 'SYNC':
            x = D[i]; i += 1
            out += x if isinstance(x, list) else [x]
        k = 0
        while j < len(C) and C[j] != 'SYNC' and (k < ratio or i >= len(D) or D[i] == 'SYNC'):
            out.append(C[j]); k += 0 if isinstance(C[j], WaitTag) else 1; j += 1
        if i < len(D) and D[i] == 'SYNC' and j < len(C) and C[j] == 'SYNC': i += 1; j += 1
        elif j < len(C) and C[j] == 'SYNC' and i >= len(D): j += 1
    return out

def wdma(n):
    fs = min(n >> 2, 6)
    L = I(f's_add_u32 m0, s26, {(n & 3) * 8192}')
    first = (n & 3) == 0
    if not first: L += I(f's_add_u32 s{44+fs}, s{44+fs}, {16*3328}')
    L += I(f'buffer_load_dwordx4 v4, s[36:39], s{44+fs} offen lds', tag=f'W{n}')
    L += I(f'buffer_load_dwordx4 v5, s[36:39], s{44+fs} offen offset:1024 lds', tag=f'W{n}')
    return L

def pgen_frag(s, cb, X, dst_v, T):
    L = []
    for jp in range(4):
        src = []
        for e in range(2):
            sl = slot(8 * s + 2 * jp + e)
            if sl[0] == 'mul':
                t = T + (2 * jp + e) % 4
                L += I(f'v_mul_f32 v{t}, v{X(sl[1])}, v{X(sl[2])}'); src.append(f'v{t}')
            elif sl[0] == 'lin': src.append(f'v{X(sl[1])}')
            elif sl[0] == 'one': src.append('1.0')
            else: src.append('0')
        L += I(f'v_cvt_pk_bf16_f32 v{dst_v + jp}, {src[0]}, {src[1]}', tag='P')
    return L

def pgen_all():
    out = []
    for s in list(range(18, 24)) + list(range(18)):
        for cb in range(2):
            X = XE if cb == 0 else XO
            if s < 18: out.append(pgen_frag(s, cb, X, 112 + 8 * s + 4 * cb, PT))
            else:
                tmp = PT + 4 + 4 * cb
                L = pgen_frag(s, cb, X, tmp, PT)
                for k in range(4): L += I(f'v_accvgpr_write_b32 a{172 + 8*(s-18) + 4*cb + k}, v{tmp + k}', tag='P')
                out.append(L)
    return out

def x_unpack():
    L = []
    for i in range(26): L += I(f'v_lshlrev_b32 v{XE(i)}, 16, v{XO(i)}\nv_and_b32 v{XO(i)}, 0xffff0000, v{XO(i)}')
    return L

def cw_off(g):
    if g < 32: return 10, ((2 + (g >> 3)) & 3) * 8192 + (g & 7) * 1024
    return 11, (g - 32) * 1024
def cin_reads(s):
    L = []
    for m in range(2):
        if m == 0 and s >= 22: continue
        b, off = cw_off(fragidx(s, m))
        L += I(f'ds_read_b128 {AFR(s, m)}, v{b} offset:{off}')
    return L
def cin_mfmas(s):
    L = []
    for m in range(2):
        if m == 0 and s >= 22: continue
        for cb in range(2):
            L += I(f'v_mfma_f32_32x32x16_bf16 {CA(m, cb)}, {AFR(s, m)}, {Pfrag(s, cb)}, {"0" if s == 0 else CA(m, cb)}', tag='CIN')
    return L

def part_load():
    return I('buffer_load_dwordx2 v[14:15], v12, s[28:31], s62 offen sc1')
def final_setup():
    return I(f'''s_add_u32 s28, s24, {WS_PART}
    s_addc_u32 s29, s25, 0
    s_mov_b32 s30, {PART_BYTES}
    s_mov_b32 s31, 0x20000
    s_lshl_b32 s62, s61, 8
    v_lshlrev_b32 v12, 3, v1
    v_mov_b32 v13, {OOB}
    v_cmp_gt_u32 vcc, 26, v1
    v_cndmask_b32 v12, v13, v12, vcc''')
def final_tail(sfx):
    L = I('v_mul_f32 v8, v16, v48\nv_mul_f32 v9, v32, v64')
    for r in range(1, 16): L += I(f'v_fmac_f32 v8, v{16+r}, v{48+r}\nv_fmac_f32 v9, v{32+r}, v{64+r}')
    L += I('v_add_f32 v8, v8, v9')
    L += srd(96, 20, 2048)
    L += I(f'''s_lshl_b32 s63, s63, 16
    s_lshl_b32 s61, s61, 1
    v_mov_b32 v9, s27
    L_chk{sfx}:
    s_waitcnt vmcnt(0)
    v_cmp_ne_u32 vcc, v9, v15
    s_and_b32 vcc_lo, vcc_lo, 0x3ffffff
    s_cbranch_scc1 L_slow{sfx}
    v_add_f32 v8, v8, v14''')
    for sh in (1, 2, 4, 8):
        L += I(f'v_add_f32_dpp v8, v8, v8 row_shr:{sh} row_mask:0xf bank_mask:0xf bound_ctrl:1')
    L += I('v_add_f32_dpp v8, v8, v8 row_bcast:15 row_mask:0xa bank_mask:0xf')
    L += I('v_add_f32_dpp v8, v8, v8 row_bcast:31 row_mask:0xc bank_mask:0xf')
    L += I('''v_add_f32 v8, s63, v8
    v_cmp_eq_u32 vcc, 63, v1
    v_cvt_pk_bf16_f32 v8, v8, v8
    v_cndmask_b32 v13, v13, 0, vcc
    buffer_store_short v8, v13, s[96:99], s61 offen''')
    slow = I(f'L_slow{sfx}:\ns_sleep 1') + part_load() + I(f's_branch L_chk{sfx}')
    return L, slow

def gelu(x, t):
    return I(f'''v_mul_f32 v{t}, v{x}, v{x}
    v_fma_f32 v{t}, v{t}, s60, v9
    v_mul_f32 v{t}, v{t}, v{x}
    v_exp_f32 v{t}, v{t}
    v_add_f32 v{t}, 1.0, v{t}
    v_rcp_f32 v{t}, v{t}
    v_mul_f32 v{x}, v{x}, v{t}''')

def finish_debug(lbl):
    L = I('s_waitcnt vmcnt(0)') + stamp(NST - 1)
    if TS: L += ts_out(NST, lbl)
    if DBG:
        L += I(f'''s_waitcnt lgkmcnt(0)
        s_cmp_eq_u32 s2, {opt("dbgwg", 0)}
        s_cbranch_scc0 {lbl}
        v_mov_b32 v1, 0
        v_mov_b32 v8, s64
        global_store_dword v1, v8, s[22:23]''')
        for i in range(1, NST):
            L += I(f's_sub_u32 s3, s{64+2*i}, s64\nv_mov_b32 v8, s3\nglobal_store_dword v1, v8, s[22:23] offset:{4*i}')
        L += I(f'{lbl}:')
    return L

def dnn_path():
    pre = I('''s_mul_i32 s41, s41, 26
    s_add_u32 s41, s41, s43
    s_and_b32 s42, s41, 7
    s_lshr_b32 s41, s41, 3
    v_lshrrev_b32 v8, 6, v0
    v_and_b32 v1, 63, v0
    v_readfirstlane_b32 s40, v8
    v_lshlrev_b32 v9, 4, v1
    v_lshrrev_b32 v10, 3, v1
    v_and_b32 v11, 7, v1
    v_lshrrev_b32 v12, 1, v10
    v_xor_b32 v13, v11, v12
    v_lshlrev_b32 v13, 4, v13
    v_lshl_add_u32 v2, v10, 7, v13
    v_xor_b32 v3, 64, v2
    s_lshl_b32 s58, s40, 12
    s_mul_i32 s60, s42, 13312
    s_add_u32 s60, s60, s58''')
    pre += I(f's_add_u32 m0, s58, {IDXS}')
    pre += I(f'''v_and_b32 v12, 1, v12
    v_lshlrev_b32 v12, 2, v12
    v_xor_b32 v12, v11, v12
    v_lshlrev_b32 v12, 4, v12
    s_movk_i32 s58, 3328
    v_mad_u32_u24 v4, v10, s58, v12
    v_add_u32 v5, {8*3328 - 1024}, v4
    s_lshl_b32 s26, s40, 11
    s_add_u32 s26, s26, {RING}
    s_mul_i32 s61, s42, 6
    s_lshr_b32 s61, s61, 3
    s_mul_i32 s62, s40, 6
    s_lshl_b32 s63, s41, 7
    s_add_u32 s58, s61, s62
    s_mul_i32 s44, s58, {64*3328}
    s_add_u32 s44, s44, s63
    s_lshl_b32 s51, s58, 2''')
    pre += I('s_waitcnt lgkmcnt(0)')
    pre += srd(28, 4, 106496)
    D = []
    for u in range(4): D.append(I(f'buffer_load_dwordx4 v9, s[28:31], s60 offen offset:{1024*u} lds', tag='idx'))
    D[0] = D[0] + srd(36, 12, 1664 * 3328)
    D[1] = D[1] + srd(32, 6, 128000)
    D[2] = D[2] + I(f's_load_dword s27, s[24:25], {WS_EPOCH}\ns_load_dword s63, s[18:19], 0\ns_lshl_b32 s3, s43, 2\ns_add_u32 s3, s3, s40')
    w01 = wdma(0) + wdma(1)
    D.append(w01[:2]); D.append(w01[2:3]); D.append(w01[3:6]); D.append(w01[6:])
    tab = []
    for q in range(8):
        for u in range(4):
            x = I(f'buffer_load_dwordx4 v{2 + (u & 1)}, s[32:35], s96 offen offset:{1024*u} lds', tag='tab')
            if u == 0: x = I('s_and_b32 s96, s3, 31\ns_lshl_b32 s96, s96, 12\ns_mov_b32 m0, s96\ns_add_u32 s3, s3, 4') + x
            tab.append(x)
    n1 = opt('n1', 8); n2 = opt('n2', 16)
    D += tab[:n1] + ['SYNC'] + tab[n1:n2] + ['SYNC']
    w23 = wdma(2) + wdma(3)
    rest = tab[n2:]
    D += [w23[:3], w23[3:4], w23[4:7], w23[7:]] + rest
    C = []
    C += I('s_lshl_b32 s59, s41, 7')
    for fs in range(1, 6):
        C += I(f'''s_add_u32 s58, s61, {fs}
        s_sub_u32 s{51+fs}, s58, 6
        s_min_u32 s58, s58, s{51+fs}
        s_add_u32 s58, s58, s62
        s_mul_i32 s{44+fs}, s58, {64*3328}
        s_add_u32 s{44+fs}, s{44+fs}, s59
        s_lshl_b32 s{51+fs}, s58, 2''')
    C += I(f'''s_lshr_b32 s58, s40, 1
    s_add_u32 s58, s58, 24
    s_lshl_b32 s57, s58, 2
    s_add_u32 s58, s40, 48
    s_mul_i32 s50, s58, {32*3328}
    s_add_u32 s50, s50, s59''')
    C += I('''v_bfe_u32 v10, v1, 2, 2
    v_lshrrev_b32 v11, 5, v1
    v_lshl_add_u32 v12, v11, 3, v10
    v_lshlrev_b32 v12, 7, v12
    v_bfe_u32 v13, v1, 4, 1
    v_lshl_add_u32 v12, v13, 5, v12
    v_and_b32 v13, 3, v1
    v_lshl_add_u32 v12, v13, 3, v12
    v_lshrrev_b32 v13, 1, v10
    v_lshlrev_b32 v13, 6, v13
    v_xor_b32 v12, v12, v13
    v_add_u32 v6, s26, v12
    v_xor_b32 v7, 64, v6
    v_and_b32 v10, 31, v1
    v_mul_u32_u24 v8, 104, v10''')
    for mb in range(4):
        C += I(f's_add_u32 s58, s40, {mb}\ns_and_b32 s58, s58, 3\ns_mul_i32 s58, s58, 3328\ns_add_u32 s58, s58, {IDXS}\nv_add_u32 v{12+mb}, s58, v8')
    for fs in range(7):
        for mb in range(4): C += I(f'v_add_u32 v{XI(fs, mb)}, s{51+fs}, v{12+mb}')
    C += I(f'''s_lshl_b32 s61, s41, 2
    s_add_u32 s61, s61, s40
    s_mul_i32 s58, s61, 104
    s_add_u32 s58, s58, {IDXS}
    v_lshl_add_u32 v12, v11, 2, s58
    v_mul_u32_u24 v13, 100, v11
    v_sub_u32 v13, 100, v13
    v_add_u32 v13, s58, v13
    s_lshl_b32 s58, s42, 7
    s_add_u32 s61, s61, s58
    v_lshlrev_b32 v11, 4, v11
    v_lshrrev_b32 v14, 2, v10
    v_lshlrev_b32 v14, 4, v14
    v_and_b32 v15, 3, v10
    v_lshl_add_u32 v14, v15, 2, v14
    s_and_b32 s58, s40, 1
    s_lshl_b32 s58, s58, 6
    v_xor_b32 v15, s58, v11''')
    C += ['SYNC', WaitTag('idx')] + I('s_barrier')
    for fs in range(7):
        for mb in range(4): C += I(f'ds_read_b32 v{XI(fs, mb)}, v{XI(fs, mb)}')
    for i in range(25): C += I(f'ds_read_b32 v{XO(i)}, v12 offset:{4*i}')
    C += I(f'ds_read_b32 v{XO(25)}, v13')
    C += srd(96, 14, 3328)[0:0]
    C += I('s_waitcnt lgkmcnt(0)\ns_barrier') + ['SYNC']
    C += I('s_movk_i32 s59, 0x70\ns_add_u32 s27, s27, 1')
    for fs in range(7):
        for mb in range(4):
            r = XI(fs, mb)
            C += I(f'v_lshlrev_b32 v8, 3, v{r}\nv_bitop3_b32 v8, v8, s59, v{15 if fs == 6 else 11} bitop3:0x6a\nv_lshl_add_u32 v{r}, v{r}, 7, v8')
    for i in range(26):
        r = XO(i)
        C += I(f'v_lshlrev_b32 v8, 3, v{r}\nv_bitop3_b32 v8, v8, s59, v14 bitop3:0x6a\nv_lshl_add_u32 v{r}, v{r}, 7, v8')
    L = pre + merge(D, C, opt('ratio', 9))
    L += srd(96, 14, 3328)
    L += I(f'''v_lshlrev_b32 v8, 1, v10
    v_mov_b32 v12, {OOB}
    v_cmp_gt_u32 vcc, 32, v1
    v_cndmask_b32 v8, v12, v8, vcc
    s_lshl_b32 s60, s41, 7
    v_mov_b32 v12, 0x3f80
    v_cndmask_b32 v12, 0, v12, vcc''')
    for r in range(BIAS, BIAS + 12):
        if r not in (BIAS, BIAS + 4, ONE): L += I(f'v_accvgpr_write_b32 a{r}, 0')
    L += I(f'''v_accvgpr_write_b32 a{ONE}, v12
    buffer_load_ushort a{BIAS}, v8, s[96:99], s60 offen
    buffer_load_ushort a{BIAS+4}, v8, s[96:99], s60 offen offset:64
    s_mov_b32 s96, s16
    s_mov_b32 s97, s17
    v_lshrrev_b32 v8, 1, v11''')
    for nb in range(2):
        for rq in range(4):
            L += I(f'buffer_load_dwordx2 {ar(W2 + 8*nb + 2*rq, 2)}, v8, s[96:99], s60 offen offset:{64*nb + 16*rq}')
    L += stamp(1)
    L += [WaitTag('tab')] + I('s_barrier')
    L += stamp(2)
    def reads(n):
        fs = min(n >> 2, 6); t = n & 3; buf = n & 1
        R = [WaitTag(f'W{n}')]
        for nb in range(2):
            for q in range(2):
                R += I(f'ds_read_b64_tr_b16 {WF(buf, nb, q)}, v{6+nb} offset:{(n & 3) * 8192 + q * 512}', tag=f'R{n}')
        for mb in range(4):
            r = XI(fs, mb)
            if t: R += I(f'v_xor_b32 v{r}, {96 if t == 2 else 32}, v{r}')
            R += I(f'ds_read_b128 {XF(buf, mb)}, v{r}', tag=f'R{n}')
        return R
    filler = []
    for i in range(26): filler += I(f'ds_read_b32 v{XO(i)}, v{XO(i)}', tag='xr')
    xr = filler; filler = []
    filler += x_unpack()
    pg = pgen_all()
    marks = {}
    for k, fr in enumerate(pg):
        marks[len(filler)] = k; filler += fr
    L += reads(0) + xr
    nf = len(filler); fpos = 0
    tot_slots = 26 * 8
    f_start = opt('fstart', 4)
    for n in range(26):
        buf = n & 1
        mf = []
        for mb in range(4):
            for nb in range(2):
                mf += I(f'v_mfma_f32_32x32x16_bf16 {acc(nb, mb)}, {WF(buf, nb)}, {XF(buf, mb)}, {"0" if n == 0 else acc(nb, mb)}')
        side = []
        if n + 4 < 26: side += wdma(n + 4)
        elif n >= 22:
            o = n - 22
            side += I(f's_add_u32 m0, s26, {(n & 3) * 8192}\ns_add_u32 s58, s58, 8192' if o else f's_add_u32 m0, s26, {(n & 3) * 8192}\ns_lshl_b32 s58, s40, 11')
            for u in range(2): side += I(f'buffer_load_dwordx4 v9, s[32:35], s58 offen offset:{1024*u} sc1 lds', tag=f'CW{o}')
        if n + 1 < 26: side += reads(n + 1)
        if n == 10:
            side += I(f'v_mov_b32 v8, 0\nglobal_load_dword v13, v8, s[22:23] offset:{DBG_CNT} sc1')
        if n == 20:
            side += srd(32, 24, NFRAG * 1024)
        out = [WaitTag(f'R{n}')]
        if n == 21: out += I('L_cwchk:\nv_readfirstlane_b32 s58, v13\ns_cmp_lt_u32 s58, 48\ns_cbranch_scc1 L_cwslow')
        k = 0
        nside = sum(1 for x in side if not isinstance(x, WaitTag) and x.kind != 'label')
        for j, m in enumerate(mf):
            out.append(m)
            gi = n * 8 + j
            c = 0
            while k < len(side) and c < 3:
                out.append(side[k])
                if not isinstance(side[k], WaitTag) and side[k].kind != 'label': c += 1
                k += 1
            target = int(nf * max(0, gi + 1 - f_start) / (tot_slots - f_start) + 0.999)
            room = opt('room', 6) - c
            while fpos < min(nf, target + 3) and room > 0:
                if fpos in marks and marks[fpos] >= 41:
                    fs = marks[fpos] - 41
                    last_read_step = 4 * fs + 2 if fs < 6 else 24
                    if n <= last_read_step: break
                out.append(filler[fpos]); fpos += 1; room -= 1
        out += side[k:]
        L += out
    L += filler[fpos:]
    print('filler left after main:', nf - fpos, file=sys.stderr)
    L += stamp(3)
    L += I(f'v_add_u32 v10, {RING}, v9\nv_add_u32 v11, {CWB}, v9')
    for mb in range(1, 4):
        L += I(f's_add_u32 s58, s40, {mb}\ns_and_b32 s58, s58, 3\ns_mul_i32 s58, s58, 24576\nv_add_u32 v{1+mb}, s58, v9')
    L += I('s_mul_i32 s58, s40, 24576\nv_add_u32 v5, s58, v9')
    for nb in range(2):
        L += I(f'v_mfma_f32_32x32x16_bf16 {acc(nb, 0)}, {ar(BIAS + 4*nb, 4)}, {ar(ONE, 4)}, {acc(nb, 0)}')
    L += [WaitTag(['CW0', 'CW1'])] + I('s_barrier')
    L += stamp(4)
    EX = []
    EX += I(f's_lshl_b32 s58, s40, 12\ns_add_u32 m0, s58, {CWB}\ns_add_u32 s58, s58, 32768')
    for u in range(4): EX += I(f'buffer_load_dwordx4 v9, s[32:35], s58 offen offset:{1024*u} sc1 lds', tag='CW4')
    for mb in range(1, 4):
        for nb in range(2):
            for rq in range(4):
                EX += I(f'ds_write_b128 v{1+mb}, {ar(32*(mb-1) + 16*nb + 4*rq, 4)} offset:{(mb-1)*8192 + (nb*4+rq)*1024}', tag='xw')
    EX1 = EX
    EX = final_setup()
    EX += I(f's_mov_b32 s60, {f2u(GELU_C1):#x}\nv_mov_b32 v9, {f2u(GELU_C0):#x}')
    RT = 112
    def rdq(q):
        return [x for sidx in range(3) for x in I(f'ds_read_b128 {vr(RT + 12*(q&1) + 4*sidx, 4)}, v5 offset:{sidx*8192 + q*1024}')]
    EX += rdq(0) + rdq(1)
    for q in range(8):
        b = RT + 12 * (q & 1)
        for e in range(4): EX += I(f'v_add_f32 v{b+e}, v{b+e}, v{b+4+e}')
        for e in range(4): EX += I(f'v_add_f32 v{OWN+4*q+e}, v{OWN+4*q+e}, v{b+8+e}')
        for e in range(4): EX += I(f'v_add_f32 v{OWN+4*q+e}, v{OWN+4*q+e}, v{b+e}')
        if q + 2 < 8: EX += rdq(q + 2)
        ch = [gelu(OWN + 4*q + e, 136 + e) for e in range(4)]
        for k in range(7):
            for e in range(4): EX.append(ch[e][k])
        EX += I(f'v_cvt_pk_bf16_f32 v{144+2*q}, v{OWN+4*q}, v{OWN+4*q+1}\nv_cvt_pk_bf16_f32 v{145+2*q}, v{OWN+4*q+2}, v{OWN+4*q+3}')
        if q & 1:
            sg = q >> 1
            EX += I(f'v_mfma_f32_32x32x16_bf16 v[160:175], {ar(W2 + 4*sg, 4)}, {vr(144 + 4*sg, 4)}, {"0" if sg == 0 else "v[160:175]"}')
    EX += I(f'''s_lshl_b32 s58, s42, 7
    s_lshl_b32 s59, s40, 5
    s_add_u32 s58, s58, s59
    s_lshl_b32 s58, s58, 8
    s_lshl_b32 s59, s41, 3
    s_add_u32 s58, s58, s59
    v_lshlrev_b32 v8, 8, v1
    v_cmp_gt_u32 vcc, 32, v1
    v_cndmask_b32 v8, v13, v8, vcc
    v_mov_b32 v161, s27
    buffer_store_dwordx2 v[160:161], v8, s[28:31], s58 offen sc0 sc1''')
    EX += stamp(6)
    EX2 = EX
    LA = opt('la', 3)
    E = []
    for s in range(LA): E += cin_reads(s)
    p1 = p2 = 0; bar_done = False
    ex_rate = opt('exrate', 6)
    for s in range(24):
        mf = cin_mfmas(s)
        pre_r = cin_reads(s + LA) if s + LA < 24 else []
        need_bar = (s + LA >= 8)
        if need_bar and not bar_done:
            E += EX1[p1:]; p1 = len(EX1)
            E += [WaitTag(['CW2', 'CW3', 'CW4', 'xw'])] + I('s_barrier') + stamp(5); bar_done = True
        for j, m in enumerate(mf):
            E.append(m)
            if j < len(pre_r): E.append(pre_r[j])
            if not bar_done:
                for _ in range(opt('wrate', 2)):
                    if p1 < len(EX1): E.append(EX1[p1]); p1 += 1
            else:
                c = 0
                while p2 < len(EX2) and c < ex_rate:
                    E.append(EX2[p2]); c += 2 if EX2[p2].kind == 'trans' else 1; p2 += 1
        if s == opt('pollstep', 21): E += part_load() if p2 >= len(final_setup()) else []
    E += EX2[p2:]
    print('EX2 left after CIN:', len(EX2) - p2, file=sys.stderr)
    L += E
    check_locked(L, lambda x: x.tag == 'P', lambda x: x.tag == 'CIN', 2)
    for fs in range(7):
        for mb in range(4):
            r = f'v{XI(fs, mb)}'
            lastr = max(i for i, x in enumerate(L) if isinstance(x, Ins) and x.op == 'ds_read_b128' and x.ops[1].split()[0] == r and x.tag)
            firstp = min(i for i, x in enumerate(L) if isinstance(x, Ins) and x.tag == 'P' and r in x.defs)
            assert firstp > lastr, (fs, mb)
    L += stamp(7)
    tail, slow = final_tail('A')
    L += tail + stamp(8) + finish_debug('L_tsA') + I('s_endpgm') + slow
    L += I(f'L_cwslow:\ns_sleep 4\nglobal_load_dword v13, v8, s[22:23] offset:{DBG_CNT} sc1\ns_waitcnt vmcnt(0)\ns_branch L_cwchk')
    return L

def helper_path():
    L = I(f'''L_helper:
    s_sub_u32 s40, s43, 26
    s_lshl_b32 s40, s40, 3
    s_add_u32 s40, s40, s41
    s_mov_b32 s84, s40
    s_waitcnt lgkmcnt(0)
    s_load_dword s27, s[24:25], {WS_EPOCH}
    s_load_dword s85, s[18:19], 0
    s_cmp_ge_u32 s40, 32
    s_cbranch_scc1 L_signal''')
    L += prep_code(I('s_waitcnt vmcnt(0)\ns_barrier'))
    L += I(f'''L_signal:
    s_waitcnt lgkmcnt(0)
    v_mov_b32 v8, 0
    v_mov_b32 v2, 1
    v_cmp_eq_u32 vcc, 0, v0
    s_and_saveexec_b64 s[44:45], vcc
    s_cbranch_execz L_noadd
    global_atomic_add v8, v2, s[22:23] offset:{DBG_CNT} sc1
    L_noadd:
    s_mov_b64 exec, -1''')
    L += stamp(1)
    XS = 0
    L += I('''v_and_b32 v1, 63, v0
    v_lshrrev_b32 v8, 6, v0
    v_lshrrev_b32 v10, 3, v1
    v_readfirstlane_b32 s40, v8
    v_lshlrev_b32 v9, 4, v1
    s_and_b32 s61, s84, 7
    s_lshl_b32 s61, s61, 7
    s_lshr_b32 s58, s84, 3
    s_lshl_b32 s58, s58, 2
    s_add_u32 s61, s61, s58
    s_add_u32 s61, s61, s40
    s_add_u32 s61, s61, 104
    s_mul_i32 s42, s61, 104
    s_add_u32 s27, s27, 1
    s_mov_b32 s63, s85''')
    for u in range(4): L += I(f'v_add_u32 v{12+u}, {8*u}, v10')
    L += I('v_cmp_gt_u32 vcc, 26, v15\nv_cndmask_b32 v15, 0, v15, vcc')
    for u in range(4): L += I(f'v_lshlrev_b32 v{12+u}, 2, v{12+u}')
    L += srd(28, 4, 106496) + srd(36, 6, 128000) + srd(32, 24, NFRAG * 1024)
    for u in range(4): L += I(f'buffer_load_dword v{12+u}, v{12+u}, s[28:31], s42 offen')
    L += I(f'''v_and_b32 v11, 7, v1
    v_lshlrev_b32 v11, 4, v11
    s_lshl_b32 s44, s40, 12
    s_barrier''')
    for u in range(4):
        L += I(f's_add_u32 m0, s44, {1024*u}\nv_lshl_add_u32 v{12+u}, v{12+u}, 7, v11\nbuffer_load_dwordx4 v{12+u}, s[36:39], 0 offen lds', tag='xr')
    L += I('''v_and_b32 v5, 31, v1
    v_lshlrev_b32 v5, 2, v5
    v_lshrrev_b32 v6, 5, v1
    v_lshl_add_u32 v5, v6, 7, v5
    v_add_u32 v5, s44, v5''')
    L += [WaitTag('xr')]
    for i in range(26): L += I(f'ds_read_b32 v{XO(i)}, v5 offset:{128*i}')
    L += x_unpack()
    for fr in pgen_all(): L += fr
    L += final_setup()
    L += I(f'v_add_u32 v10, {RING}, v9\nv_add_u32 v11, {CWB}, v9\nv_mov_b32 v8, 0')
    L += stamp(2)
    L += I(f'''L_hpoll:
    global_load_dword v2, v8, s[22:23] offset:{DBG_CNT} sc1
    s_waitcnt vmcnt(0)
    v_readfirstlane_b32 s58, v2
    s_cmp_ge_u32 s58, 48
    s_cbranch_scc1 L_hgo
    s_sleep 8
    s_branch L_hpoll
    L_hgo:''')
    L += stamp(3)
    L += I(f's_lshl_b32 s58, s40, 11\ns_add_u32 s26, s58, {RING}')
    for o in range(4):
        L += I(f's_add_u32 m0, s26, {((2 + o) & 3) * 8192}')
        for u in range(2): L += I(f'buffer_load_dwordx4 v9, s[32:35], s58 offen offset:{1024*u} sc1 lds')
        L += I('s_add_u32 s58, s58, 8192')
    L += I(f's_lshl_b32 s58, s40, 12\ns_add_u32 m0, s58, {CWB}\ns_add_u32 s58, s58, 32768')
    for u in range(4): L += I(f'buffer_load_dwordx4 v9, s[32:35], s58 offen offset:{1024*u} sc1 lds')
    L += I('s_waitcnt vmcnt(0)\ns_barrier')
    L += stamp(4) + stamp(5) + stamp(6)
    LA = 3
    for s in range(LA): L += cin_reads(s)
    for s in range(24):
        mf = cin_mfmas(s); pr = cin_reads(s + LA) if s + LA < 24 else []
        for j, m in enumerate(mf):
            L.append(m)
            if j < len(pr): L.append(pr[j])
    L += part_load()
    L += stamp(7)
    tail, slow = final_tail('B')
    L += tail + stamp(8)
    L += I(f'''s_cmp_eq_u32 s84, 47
    s_cbranch_scc0 L_hend
    s_cmp_eq_u32 s40, 0
    s_cbranch_scc0 L_hend
    s_mov_b32 s62, 0
    L_ep:''') + part_load() + I(f'''s_waitcnt vmcnt(0)
    v_cmp_ne_u32 vcc, v9, v15
    s_and_b32 vcc_lo, vcc_lo, 0x3ffffff
    s_cbranch_scc1 L_ep
    s_add_u32 s62, s62, {128*256}
    s_cmp_lt_u32 s62, {1024*256}
    s_cbranch_scc1 L_ep
    v_mov_b32 v8, {WS_EPOCH}
    global_store_dword v8, v9, s[24:25] sc0 sc1
    L_hend:''')
    L += finish_debug('L_tsB') + I('s_endpgm') + slow
    return L

prog = stamp(0) + I('''s_load_dwordx16 s[4:19], s[0:1], 0
s_load_dwordx4 s[20:23], s[0:1], 64
s_load_dwordx2 s[24:25], s[0:1], 80
s_cmp_ge_u32 s2, 256
s_cbranch_scc1 L_exit
s_and_b32 s41, s2, 7
s_lshr_b32 s43, s2, 3
s_cmp_ge_u32 s43, 26
s_cbranch_scc1 L_helper''') + dnn_path() + helper_path() + I('L_exit:\ns_endpgm')
n1 = KN + '_kernel'
txt = HDR_COMMENT + '; @launch grid=(256,1,1) block=(256,1,1) lds=163840\n.amdgcn_target "amdgcn-amd-amdhsa--gfx950"\n.text\n'
txt += kstart(n1) + finalize(prog) + '\n.section .rodata,"a"\n' + kd(n1, 512, 256)
out = [a for a in ARGS if not a.startswith('--')][0]
open(out, 'w').write(txt)
```

```python
import sys, os
from common import *
from prep import prep_code
ARGS = sys.argv[1:]
TS = '--ts' in ARGS; DBG = '--dbg' in ARGS
def opt(name, default):
    for a in ARGS:
        if a.startswith(f'--{name}='): return type(default)(a.split('=')[1])
    return default
LEAK = opt('leak', 0)
def stamp(i): return ts_stamp(i) if (TS or DBG or LEAK) else []
NST = 10
RING = 131072; IDXS = RING + 16384; CWB = 98304
WS_EPOCH = 61440
WS_PART = 65536
PART_BYTES = 1024 * 256
DBG_CNT = 128
OOB = 0x7fffffff
XE = lambda i: 16 + i
XO = lambda i: 42 + i
CA = lambda m, cb: vr(16 + 16 * (2 * m + cb), 16)
OWN = 80
PT = 68
XI = lambda fs, mb: 228 + 4 * fs + mb
def Pfrag(s, cb):
    return vr(112 + 8 * s + 4 * cb, 4) if s < 18 else ar(172 + 8 * (s - 18) + 4 * cb, 4)
def acc(nb, mb): return vr(OWN + 16 * nb, 16) if mb == 0 else ar(32 * (mb - 1) + 16 * nb, 16)
WF = lambda buf, nb, q=None: ar(96 + 8 * buf + 4 * nb, 4) if q is None else ar(96 + 8 * buf + 4 * nb + 2 * q, 2)
XF = lambda buf, mb: ar(112 + 16 * buf + 4 * mb, 4)
BIAS, ONE, W2 = 144, 152, 156
AFR = lambda s, m: ar(96 + 8 * (s % 6) + 4 * m, 4)

def merge(D, C, ratio):
    out = []; i = j = 0
    while i < len(D) or j < len(C):
        if i < len(D) and D[i] != 'SYNC':
            x = D[i]; i += 1
            out += x if isinstance(x, list) else [x]
        k = 0
        while j < len(C) and C[j] != 'SYNC' and (k < ratio or i >= len(D) or D[i] == 'SYNC'):
            out.append(C[j]); k += 0 if isinstance(C[j], WaitTag) else 1; j += 1
        if i < len(D) and D[i] == 'SYNC' and j < len(C) and C[j] == 'SYNC': i += 1; j += 1
        elif j < len(C) and C[j] == 'SYNC' and i >= len(D): j += 1
    return out

def wdma(n):
    fs = min(n >> 2, 6)
    L = I(f's_add_u32 m0, s26, {(n & 3) * 8192}')
    first = (n & 3) == 0
    if not first: L += I(f's_add_u32 s{44+fs}, s{44+fs}, {16*3328}')
    L += I(f'buffer_load_dwordx4 v4, s[36:39], s{44+fs} offen lds', tag=f'W{n}')
    L += I(f'buffer_load_dwordx4 v5, s[36:39], s{44+fs} offen offset:1024 lds', tag=f'W{n}')
    return L

def pgen_frag(s, cb, X, dst_v, T):
    L = []
    for jp in range(4):
        src = []
        for e in range(2):
            sl = slot(8 * s + 2 * jp + e)
            if sl[0] == 'mul':
                t = T + (2 * jp + e) % 4
                L += I(f'v_mul_f32 v{t}, v{X(sl[1])}, v{X(sl[2])}'); src.append(f'v{t}')
            elif sl[0] == 'lin': src.append(f'v{X(sl[1])}')
            elif sl[0] == 'one': src.append('1.0')
            else: src.append('0')
        L += I(f'v_cvt_pk_bf16_f32 v{dst_v + jp}, {src[0]}, {src[1]}', tag='P')
    return L

def pgen_all():
    out = []
    for s in list(range(18, 24)) + list(range(18)):
        for cb in range(2):
            X = XE if cb == 0 else XO
            if s < 18: out.append(pgen_frag(s, cb, X, 112 + 8 * s + 4 * cb, PT))
            else:
                tmp = PT + 4 + 4 * cb
                L = pgen_frag(s, cb, X, tmp, PT)
                for k in range(4): L += I(f'v_accvgpr_write_b32 a{172 + 8*(s-18) + 4*cb + k}, v{tmp + k}', tag='P')
                out.append(L)
    return out

def x_unpack():
    L = []
    for i in range(26): L += I(f'v_lshlrev_b32 v{XE(i)}, 16, v{XO(i)}\nv_and_b32 v{XO(i)}, 0xffff0000, v{XO(i)}')
    return L

def cw_off(g):
    if g < 32: return 10, ((2 + (g >> 3)) & 3) * 8192 + (g & 7) * 1024
    return 11, (g - 32) * 1024
def cin_reads(s):
    L = []
    for m in range(2):
        if m == 0 and s >= 22: continue
        b, off = cw_off(fragidx(s, m))
        L += I(f'ds_read_b128 {AFR(s, m)}, v{b} offset:{off}')
    return L
def cin_mfmas(s):
    L = []
    for m in range(2):
        if m == 0 and s >= 22: continue
        for cb in range(2):
            L += I(f'v_mfma_f32_32x32x16_bf16 {CA(m, cb)}, {AFR(s, m)}, {Pfrag(s, cb)}, {"0" if s == 0 else CA(m, cb)}', tag='CIN')
    return L

def part_load():
    return I('buffer_load_dwordx2 v[14:15], v12, s[28:31], s62 offen sc1')
def final_setup():
    return I(f'''s_add_u32 s28, s24, {WS_PART}
    s_addc_u32 s29, s25, 0
    s_mov_b32 s30, {PART_BYTES}
    s_mov_b32 s31, 0x20000
    s_lshl_b32 s62, s61, 8
    v_lshlrev_b32 v12, 3, v1
    v_mov_b32 v13, {OOB}
    v_cmp_gt_u32 vcc, 26, v1
    v_cndmask_b32 v12, v13, v12, vcc''')
def final_tail(sfx):
    L = I('v_mul_f32 v8, v16, v48\nv_mul_f32 v9, v32, v64')
    for r in range(1, 16): L += I(f'v_fmac_f32 v8, v{16+r}, v{48+r}\nv_fmac_f32 v9, v{32+r}, v{64+r}')
    L += I('v_add_f32 v8, v8, v9')
    L += srd(96, 20, 2048)
    L += I(f'''s_lshl_b32 s63, s63, 16
    s_lshl_b32 s61, s61, 1
    v_mov_b32 v9, s27
    L_chk{sfx}:
    s_waitcnt vmcnt(0)
    v_cmp_ne_u32 vcc, v9, v15
    s_and_b32 vcc_lo, vcc_lo, 0x3ffffff
    s_cbranch_scc1 L_slow{sfx}
    v_add_f32 v8, v8, v14''')
    for sh in (1, 2, 4, 8):
        L += I(f'v_add_f32_dpp v8, v8, v8 row_shr:{sh} row_mask:0xf bank_mask:0xf bound_ctrl:1')
    L += I('v_add_f32_dpp v8, v8, v8 row_bcast:15 row_mask:0xa bank_mask:0xf')
    L += I('v_add_f32_dpp v8, v8, v8 row_bcast:31 row_mask:0xc bank_mask:0xf')
    if LEAK and sfx == 'A':
        L += stamp(8) + I(f'''s_waitcnt lgkmcnt(0)
        s_cmp_ge_u32 s61, 16
        s_cbranch_scc1 L_noleak
        s_sub_u32 s3, s80, s64
        s_cmp_lt_u32 s3, {LEAK}
        s_cbranch_scc1 L_noleak
        s_mov_b32 s63, 0''')
        for k, st in enumerate([1, 2, 3, 4, 5, 6, 7, 8]):
            L += I(f's_sub_u32 s3, s{64+2*st}, s64\ns_cmp_eq_u32 s61, {2*k}\ns_cselect_b32 s63, s3, s63')
        L += I('v_cvt_f32_u32 v8, s63\nv_mul_f32 v8, 0x3c23d70a, v8\ns_mov_b32 s63, 0\nL_noleak:')
    L += I('''v_add_f32 v8, s63, v8
    v_cmp_eq_u32 vcc, 63, v1
    v_cvt_pk_bf16_f32 v8, v8, v8
    v_cndmask_b32 v13, v13, 0, vcc
    buffer_store_short v8, v13, s[96:99], s61 offen''')
    slow = I(f'L_slow{sfx}:\ns_sleep 1') + part_load() + I(f's_branch L_chk{sfx}')
    return L, slow

def gelu(x, t):
    return I(f'''v_mul_f32 v{t}, v{x}, v{x}
    v_fma_f32 v{t}, v{t}, s60, v9
    v_mul_f32 v{t}, v{t}, v{x}
    v_exp_f32 v{t}, v{t}
    v_add_f32 v{t}, 1.0, v{t}
    v_rcp_f32 v{t}, v{t}
    v_mul_f32 v{x}, v{x}, v{t}''')

def finish_debug(lbl):
    L = I('s_waitcnt vmcnt(0)') + stamp(NST - 1)
    if TS: L += ts_out(NST, lbl)
    if DBG:
        L += I(f'''s_waitcnt lgkmcnt(0)
        s_cmp_eq_u32 s2, {opt("dbgwg", 0)}
        s_cbranch_scc0 {lbl}
        v_mov_b32 v1, 0
        v_mov_b32 v8, s64
        global_store_dword v1, v8, s[22:23]''')
        for i in range(1, NST):
            L += I(f's_sub_u32 s3, s{64+2*i}, s64\nv_mov_b32 v8, s3\nglobal_store_dword v1, v8, s[22:23] offset:{4*i}')
        L += I(f'{lbl}:')
    return L

def dnn_path():
    pre = I('''s_mul_i32 s41, s41, 26
    s_add_u32 s41, s41, s43
    s_and_b32 s42, s41, 7
    s_lshr_b32 s41, s41, 3
    v_lshrrev_b32 v8, 6, v0
    v_and_b32 v1, 63, v0
    v_readfirstlane_b32 s40, v8
    v_lshlrev_b32 v9, 4, v1
    v_lshrrev_b32 v10, 3, v1
    v_and_b32 v11, 7, v1
    v_lshrrev_b32 v12, 1, v10
    v_xor_b32 v13, v11, v12
    v_lshlrev_b32 v13, 4, v13
    v_lshl_add_u32 v2, v10, 7, v13
    v_xor_b32 v3, 64, v2
    s_lshl_b32 s58, s40, 12
    s_mul_i32 s60, s42, 13312
    s_add_u32 s60, s60, s58''')
    pre += I(f's_add_u32 m0, s58, {IDXS}')
    pre += I(f'''v_and_b32 v12, 1, v12
    v_lshlrev_b32 v12, 2, v12
    v_xor_b32 v12, v11, v12
    v_lshlrev_b32 v12, 4, v12
    s_movk_i32 s58, 3328
    v_mad_u32_u24 v4, v10, s58, v12
    v_add_u32 v5, {8*3328 - 1024}, v4
    s_lshl_b32 s26, s40, 11
    s_add_u32 s26, s26, {RING}
    s_mul_i32 s61, s42, 6
    s_lshr_b32 s61, s61, 3
    s_mul_i32 s62, s40, 6
    s_lshl_b32 s63, s41, 7
    s_add_u32 s58, s61, s62
    s_mul_i32 s44, s58, {64*3328}
    s_add_u32 s44, s44, s63
    s_lshl_b32 s51, s58, 2''')
    pre += I('s_waitcnt lgkmcnt(0)')
    pre += srd(28, 4, 106496)
    D = []
    for u in range(4): D.append(I(f'buffer_load_dwordx4 v9, s[28:31], s60 offen offset:{1024*u} lds', tag='idx'))
    D[0] = D[0] + srd(36, 12, 1664 * 3328)
    D[1] = D[1] + srd(32, 6, 128000)
    D[2] = D[2] + I(f's_load_dword s27, s[24:25], {WS_EPOCH}\ns_load_dword s63, s[18:19], 0\ns_lshl_b32 s3, s43, 2\ns_add_u32 s3, s3, s40')
    w01 = wdma(0) + wdma(1)
    D.append(w01[:2]); D.append(w01[2:3]); D.append(w01[3:6]); D.append(w01[6:])
    tab = []
    for q in range(8):
        for u in range(4):
            x = I(f'buffer_load_dwordx4 v{2 + (u & 1)}, s[32:35], s96 offen offset:{1024*u} lds', tag='tab')
            if u == 0: x = I('s_and_b32 s96, s3, 31\ns_lshl_b32 s96, s96, 12\ns_mov_b32 m0, s96\ns_add_u32 s3, s3, 4') + x
            tab.append(x)
    n1 = opt('n1', 8); n2 = opt('n2', 16)
    D += tab[:n1] + ['SYNC'] + tab[n1:n2] + ['SYNC']
    w23 = wdma(2) + wdma(3)
    rest = tab[n2:]
    D += [w23[:3], w23[3:4], w23[4:7], w23[7:]] + rest
    C = []
    C += I('s_lshl_b32 s59, s41, 7')
    for fs in range(1, 6):
        C += I(f'''s_add_u32 s58, s61, {fs}
        s_sub_u32 s{51+fs}, s58, 6
        s_min_u32 s58, s58, s{51+fs}
        s_add_u32 s58, s58, s62
        s_mul_i32 s{44+fs}, s58, {64*3328}
        s_add_u32 s{44+fs}, s{44+fs}, s59
        s_lshl_b32 s{51+fs}, s58, 2''')
    C += I(f'''s_lshr_b32 s58, s40, 1
    s_add_u32 s58, s58, 24
    s_lshl_b32 s57, s58, 2
    s_add_u32 s58, s40, 48
    s_mul_i32 s50, s58, {32*3328}
    s_add_u32 s50, s50, s59''')
    C += I('''v_bfe_u32 v10, v1, 2, 2
    v_lshrrev_b32 v11, 5, v1
    v_lshl_add_u32 v12, v11, 3, v10
    v_lshlrev_b32 v12, 7, v12
    v_bfe_u32 v13, v1, 4, 1
    v_lshl_add_u32 v12, v13, 5, v12
    v_and_b32 v13, 3, v1
    v_lshl_add_u32 v12, v13, 3, v12
    v_lshrrev_b32 v13, 1, v10
    v_lshlrev_b32 v13, 6, v13
    v_xor_b32 v12, v12, v13
    v_add_u32 v6, s26, v12
    v_xor_b32 v7, 64, v6
    v_and_b32 v10, 31, v1
    v_mul_u32_u24 v8, 104, v10''')
    for mb in range(4):
        C += I(f's_add_u32 s58, s40, {mb}\ns_and_b32 s58, s58, 3\ns_mul_i32 s58, s58, 3328\ns_add_u32 s58, s58, {IDXS}\nv_add_u32 v{12+mb}, s58, v8')
    for fs in range(7):
        for mb in range(4): C += I(f'v_add_u32 v{XI(fs, mb)}, s{51+fs}, v{12+mb}')
    C += I(f'''s_lshl_b32 s61, s41, 2
    s_add_u32 s61, s61, s40
    s_mul_i32 s58, s61, 104
    s_add_u32 s58, s58, {IDXS}
    v_lshl_add_u32 v12, v11, 2, s58
    v_mul_u32_u24 v13, 100, v11
    v_sub_u32 v13, 100, v13
    v_add_u32 v13, s58, v13
    s_lshl_b32 s58, s42, 7
    s_add_u32 s61, s61, s58
    v_lshlrev_b32 v11, 4, v11
    v_lshrrev_b32 v14, 2, v10
    v_lshlrev_b32 v14, 4, v14
    v_and_b32 v15, 3, v10
    v_lshl_add_u32 v14, v15, 2, v14
    s_and_b32 s58, s40, 1
    s_lshl_b32 s58, s58, 6
    v_xor_b32 v15, s58, v11''')
    C += ['SYNC', WaitTag('idx')] + I('s_barrier')
    for fs in range(7):
        for mb in range(4): C += I(f'ds_read_b32 v{XI(fs, mb)}, v{XI(fs, mb)}')
    for i in range(25): C += I(f'ds_read_b32 v{XO(i)}, v12 offset:{4*i}')
    C += I(f'ds_read_b32 v{XO(25)}, v13')
    C += srd(96, 14, 3328)[0:0]
    C += I('s_waitcnt lgkmcnt(0)\ns_barrier') + ['SYNC']
    C += I('s_movk_i32 s59, 0x70\ns_add_u32 s27, s27, 1')
    for fs in range(7):
        for mb in range(4):
            r = XI(fs, mb)
            C += I(f'v_lshlrev_b32 v8, 3, v{r}\nv_bitop3_b32 v8, v8, s59, v{15 if fs == 6 else 11} bitop3:0x6a\nv_lshl_add_u32 v{r}, v{r}, 7, v8')
    for i in range(26):
        r = XO(i)
        C += I(f'v_lshlrev_b32 v8, 3, v{r}\nv_bitop3_b32 v8, v8, s59, v14 bitop3:0x6a\nv_lshl_add_u32 v{r}, v{r}, 7, v8')
    L = pre + merge(D, C, opt('ratio', 9))
    L += srd(96, 14, 3328)
    L += I(f'''v_lshlrev_b32 v8, 1, v10
    v_mov_b32 v12, {OOB}
    v_cmp_gt_u32 vcc, 32, v1
    v_cndmask_b32 v8, v12, v8, vcc
    s_lshl_b32 s60, s41, 7
    v_mov_b32 v12, 0x3f80
    v_cndmask_b32 v12, 0, v12, vcc''')
    for r in range(BIAS, BIAS + 12):
        if r not in (BIAS, BIAS + 4, ONE): L += I(f'v_accvgpr_write_b32 a{r}, 0')
    L += I(f'''v_accvgpr_write_b32 a{ONE}, v12
    buffer_load_ushort a{BIAS}, v8, s[96:99], s60 offen
    buffer_load_ushort a{BIAS+4}, v8, s[96:99], s60 offen offset:64
    s_mov_b32 s96, s16
    s_mov_b32 s97, s17
    v_lshrrev_b32 v8, 1, v11''')
    for nb in range(2):
        for rq in range(4):
            L += I(f'buffer_load_dwordx2 {ar(W2 + 8*nb + 2*rq, 2)}, v8, s[96:99], s60 offen offset:{64*nb + 16*rq}')
    L += stamp(1)
    L += [WaitTag('tab')] + I('s_barrier')
    L += stamp(2)
    def reads(n):
        fs = min(n >> 2, 6); t = n & 3; buf = n & 1
        R = [WaitTag(f'W{n}')]
        for nb in range(2):
            for q in range(2):
                R += I(f'ds_read_b64_tr_b16 {WF(buf, nb, q)}, v{6+nb} offset:{(n & 3) * 8192 + q * 512}', tag=f'R{n}')
        for mb in range(4):
            r = XI(fs, mb)
            if t: R += I(f'v_xor_b32 v{r}, {96 if t == 2 else 32}, v{r}')
            R += I(f'ds_read_b128 {XF(buf, mb)}, v{r}', tag=f'R{n}')
        return R
    filler = []
    for i in range(26): filler += I(f'ds_read_b32 v{XO(i)}, v{XO(i)}', tag='xr')
    xr = filler; filler = []
    filler += x_unpack()
    pg = pgen_all()
    marks = {}
    for k, fr in enumerate(pg):
        marks[len(filler)] = k; filler += fr
    L += reads(0) + xr
    nf = len(filler); fpos = 0
    tot_slots = 26 * 8
    f_start = opt('fstart', 4)
    for n in range(26):
        buf = n & 1
        mf = []
        for mb in range(4):
            for nb in range(2):
                mf += I(f'v_mfma_f32_32x32x16_bf16 {acc(nb, mb)}, {WF(buf, nb)}, {XF(buf, mb)}, {"0" if n == 0 else acc(nb, mb)}')
        side = []
        if n + 4 < 26: side += wdma(n + 4)
        elif n >= 22:
            o = n - 22
            side += I(f's_add_u32 m0, s26, {(n & 3) * 8192}\ns_add_u32 s58, s58, 8192' if o else f's_add_u32 m0, s26, {(n & 3) * 8192}\ns_lshl_b32 s58, s40, 11')
            for u in range(2): side += I(f'buffer_load_dwordx4 v9, s[32:35], s58 offen offset:{1024*u} sc1 lds', tag=f'CW{o}')
        if n + 1 < 26: side += reads(n + 1)
        if n == 10:
            side += I(f'v_mov_b32 v8, 0\nglobal_load_dword v13, v8, s[22:23] offset:{DBG_CNT} sc1')
        if n == 20:
            side += srd(32, 24, NFRAG * 1024)
        out = [WaitTag(f'R{n}')]
        if n == 21: out += I('L_cwchk:\nv_readfirstlane_b32 s58, v13\ns_cmp_lt_u32 s58, 48\ns_cbranch_scc1 L_cwslow')
        k = 0
        nside = sum(1 for x in side if not isinstance(x, WaitTag) and x.kind != 'label')
        for j, m in enumerate(mf):
            out.append(m)
            gi = n * 8 + j
            c = 0
            while k < len(side) and c < 3:
                out.append(side[k])
                if not isinstance(side[k], WaitTag) and side[k].kind != 'label': c += 1
                k += 1
            target = int(nf * max(0, gi + 1 - f_start) / (tot_slots - f_start) + 0.999)
            room = opt('room', 6) - c
            while fpos < min(nf, target + 3) and room > 0:
                if fpos in marks and marks[fpos] >= 41:
                    fs = marks[fpos] - 41
                    last_read_step = 4 * fs + 2 if fs < 6 else 24
                    if n <= last_read_step: break
                out.append(filler[fpos]); fpos += 1; room -= 1
        out += side[k:]
        L += out
    L += filler[fpos:]
    print('filler left after main:', nf - fpos, file=sys.stderr)
    L += stamp(3)
    L += I(f'v_add_u32 v10, {RING}, v9\nv_add_u32 v11, {CWB}, v9')
    for mb in range(1, 4):
        L += I(f's_add_u32 s58, s40, {mb}\ns_and_b32 s58, s58, 3\ns_mul_i32 s58, s58, 24576\nv_add_u32 v{1+mb}, s58, v9')
    L += I('s_mul_i32 s58, s40, 24576\nv_add_u32 v5, s58, v9')
    for nb in range(2):
        L += I(f'v_mfma_f32_32x32x16_bf16 {acc(nb, 0)}, {ar(BIAS + 4*nb, 4)}, {ar(ONE, 4)}, {acc(nb, 0)}')
    L += [WaitTag(['CW0', 'CW1'])] + I('s_barrier')
    L += stamp(4)
    EX = []
    EX += I(f's_lshl_b32 s58, s40, 12\ns_add_u32 m0, s58, {CWB}\ns_add_u32 s58, s58, 32768')
    for u in range(4): EX += I(f'buffer_load_dwordx4 v9, s[32:35], s58 offen offset:{1024*u} sc1 lds', tag='CW4')
    for mb in range(1, 4):
        for nb in range(2):
            for rq in range(4):
                EX += I(f'ds_write_b128 v{1+mb}, {ar(32*(mb-1) + 16*nb + 4*rq, 4)} offset:{(mb-1)*8192 + (nb*4+rq)*1024}', tag='xw')
    EX1 = EX
    EX = final_setup()
    EX += I(f's_mov_b32 s60, {f2u(GELU_C1):#x}\nv_mov_b32 v9, {f2u(GELU_C0):#x}')
    RT = 112
    def rdq(q):
        return [x for sidx in range(3) for x in I(f'ds_read_b128 {vr(RT + 12*(q&1) + 4*sidx, 4)}, v5 offset:{sidx*8192 + q*1024}')]
    EX += rdq(0) + rdq(1)
    for q in range(8):
        b = RT + 12 * (q & 1)
        for e in range(4): EX += I(f'v_add_f32 v{b+e}, v{b+e}, v{b+4+e}')
        for e in range(4): EX += I(f'v_add_f32 v{OWN+4*q+e}, v{OWN+4*q+e}, v{b+8+e}')
        for e in range(4): EX += I(f'v_add_f32 v{OWN+4*q+e}, v{OWN+4*q+e}, v{b+e}')
        if q + 2 < 8: EX += rdq(q + 2)
        ch = [gelu(OWN + 4*q + e, 136 + e) for e in range(4)]
        for k in range(7):
            for e in range(4): EX.append(ch[e][k])
        EX += I(f'v_cvt_pk_bf16_f32 v{144+2*q}, v{OWN+4*q}, v{OWN+4*q+1}\nv_cvt_pk_bf16_f32 v{145+2*q}, v{OWN+4*q+2}, v{OWN+4*q+3}')
        if q & 1:
            sg = q >> 1
            EX += I(f'v_mfma_f32_32x32x16_bf16 v[160:175], {ar(W2 + 4*sg, 4)}, {vr(144 + 4*sg, 4)}, {"0" if sg == 0 else "v[160:175]"}')
    EX += I(f'''s_lshl_b32 s58, s42, 7
    s_lshl_b32 s59, s40, 5
    s_add_u32 s58, s58, s59
    s_lshl_b32 s58, s58, 8
    s_lshl_b32 s59, s41, 3
    s_add_u32 s58, s58, s59
    v_lshlrev_b32 v8, 8, v1
    v_cmp_gt_u32 vcc, 32, v1
    v_cndmask_b32 v8, v13, v8, vcc
    v_mov_b32 v161, s27
    buffer_store_dwordx2 v[160:161], v8, s[28:31], s58 offen sc0 sc1''')
    EX += stamp(6)
    EX2 = EX
    LA = opt('la', 3)
    E = []
    for s in range(LA): E += cin_reads(s)
    p1 = p2 = 0; bar_done = False
    ex_rate = opt('exrate', 6)
    for s in range(24):
        mf = cin_mfmas(s)
        pre_r = cin_reads(s + LA) if s + LA < 24 else []
        need_bar = (s + LA >= 8)
        if need_bar and not bar_done:
            E += EX1[p1:]; p1 = len(EX1)
            E += [WaitTag(['CW2', 'CW3', 'CW4', 'xw'])] + I('s_barrier') + stamp(5); bar_done = True
        for j, m in enumerate(mf):
            E.append(m)
            if j < len(pre_r): E.append(pre_r[j])
            if not bar_done:
                for _ in range(opt('wrate', 2)):
                    if p1 < len(EX1): E.append(EX1[p1]); p1 += 1
            else:
                c = 0
                while p2 < len(EX2) and c < ex_rate:
                    E.append(EX2[p2]); c += 2 if EX2[p2].kind == 'trans' else 1; p2 += 1
        if s == opt('pollstep', 21): E += part_load() if p2 >= len(final_setup()) else []
    E += EX2[p2:]
    print('EX2 left after CIN:', len(EX2) - p2, file=sys.stderr)
    L += E
    check_locked(L, lambda x: x.tag == 'P', lambda x: x.tag == 'CIN', 2)
    for fs in range(7):
        for mb in range(4):
            r = f'v{XI(fs, mb)}'
            lastr = max(i for i, x in enumerate(L) if isinstance(x, Ins) and x.op == 'ds_read_b128' and x.ops[1].split()[0] == r and x.tag)
            firstp = min(i for i, x in enumerate(L) if isinstance(x, Ins) and x.tag == 'P' and r in x.defs)
            assert firstp > lastr, (fs, mb)
    L += stamp(7)
    tail, slow = final_tail('A')
    L += tail + stamp(8) + finish_debug('L_tsA') + I('s_endpgm') + slow
    L += I(f'L_cwslow:\ns_sleep 4\nglobal_load_dword v13, v8, s[22:23] offset:{DBG_CNT} sc1\ns_waitcnt vmcnt(0)\ns_branch L_cwchk')
    return L

def helper_path():
    L = I(f'''L_helper:
    s_sub_u32 s40, s43, 26
    s_lshl_b32 s40, s40, 3
    s_add_u32 s40, s40, s41
    s_mov_b32 s84, s40
    s_waitcnt lgkmcnt(0)
    s_load_dword s27, s[24:25], {WS_EPOCH}
    s_load_dword s85, s[18:19], 0
    s_cmp_ge_u32 s40, 32
    s_cbranch_scc1 L_signal''')
    L += prep_code(I('s_waitcnt vmcnt(0)\ns_barrier'))
    L += I(f'''L_signal:
    s_waitcnt lgkmcnt(0)
    v_mov_b32 v8, 0
    v_mov_b32 v2, 1
    v_cmp_eq_u32 vcc, 0, v0
    s_and_saveexec_b64 s[44:45], vcc
    s_cbranch_execz L_noadd
    global_atomic_add v8, v2, s[22:23] offset:{DBG_CNT} sc1
    L_noadd:
    s_mov_b64 exec, -1''')
    L += stamp(1)
    XS = 0
    L += I('''v_and_b32 v1, 63, v0
    v_lshrrev_b32 v8, 6, v0
    v_lshrrev_b32 v10, 3, v1
    v_readfirstlane_b32 s40, v8
    v_lshlrev_b32 v9, 4, v1
    s_and_b32 s61, s84, 7
    s_lshl_b32 s61, s61, 7
    s_lshr_b32 s58, s84, 3
    s_lshl_b32 s58, s58, 2
    s_add_u32 s61, s61, s58
    s_add_u32 s61, s61, s40
    s_add_u32 s61, s61, 104
    s_mul_i32 s42, s61, 104
    s_add_u32 s27, s27, 1
    s_mov_b32 s63, s85''')
    for u in range(4): L += I(f'v_add_u32 v{12+u}, {8*u}, v10')
    L += I('v_cmp_gt_u32 vcc, 26, v15\nv_cndmask_b32 v15, 0, v15, vcc')
    for u in range(4): L += I(f'v_lshlrev_b32 v{12+u}, 2, v{12+u}')
    L += srd(28, 4, 106496) + srd(36, 6, 128000) + srd(32, 24, NFRAG * 1024)
    for u in range(4): L += I(f'buffer_load_dword v{12+u}, v{12+u}, s[28:31], s42 offen')
    L += I(f'''v_and_b32 v11, 7, v1
    v_lshlrev_b32 v11, 4, v11
    s_lshl_b32 s44, s40, 12
    s_barrier''')
    for u in range(4):
        L += I(f's_add_u32 m0, s44, {1024*u}\nv_lshl_add_u32 v{12+u}, v{12+u}, 7, v11\nbuffer_load_dwordx4 v{12+u}, s[36:39], 0 offen lds', tag='xr')
    L += I('''v_and_b32 v5, 31, v1
    v_lshlrev_b32 v5, 2, v5
    v_lshrrev_b32 v6, 5, v1
    v_lshl_add_u32 v5, v6, 7, v5
    v_add_u32 v5, s44, v5''')
    L += [WaitTag('xr')]
    for i in range(26): L += I(f'ds_read_b32 v{XO(i)}, v5 offset:{128*i}')
    L += x_unpack()
    for fr in pgen_all(): L += fr
    L += final_setup()
    L += I(f'v_add_u32 v10, {RING}, v9\nv_add_u32 v11, {CWB}, v9\nv_mov_b32 v8, 0')
    L += stamp(2)
    L += I(f'''L_hpoll:
    global_load_dword v2, v8, s[22:23] offset:{DBG_CNT} sc1
    s_waitcnt vmcnt(0)
    v_readfirstlane_b32 s58, v2
    s_cmp_ge_u32 s58, 48
    s_cbranch_scc1 L_hgo
    s_sleep 8
    s_branch L_hpoll
    L_hgo:''')
    L += stamp(3)
    L += I(f's_lshl_b32 s58, s40, 11\ns_add_u32 s26, s58, {RING}')
    for o in range(4):
        L += I(f's_add_u32 m0, s26, {((2 + o) & 3) * 8192}')
        for u in range(2): L += I(f'buffer_load_dwordx4 v9, s[32:35], s58 offen offset:{1024*u} sc1 lds')
        L += I('s_add_u32 s58, s58, 8192')
    L += I(f's_lshl_b32 s58, s40, 12\ns_add_u32 m0, s58, {CWB}\ns_add_u32 s58, s58, 32768')
    for u in range(4): L += I(f'buffer_load_dwordx4 v9, s[32:35], s58 offen offset:{1024*u} sc1 lds')
    L += I('s_waitcnt vmcnt(0)\ns_barrier')
    L += stamp(4) + stamp(5) + stamp(6)
    LA = 3
    for s in range(LA): L += cin_reads(s)
    for s in range(24):
        mf = cin_mfmas(s); pr = cin_reads(s + LA) if s + LA < 24 else []
        for j, m in enumerate(mf):
            L.append(m)
            if j < len(pr): L.append(pr[j])
    L += part_load()
    L += stamp(7)
    tail, slow = final_tail('B')
    L += tail + stamp(8)
    L += I(f'''s_cmp_eq_u32 s84, 47
    s_cbranch_scc0 L_hend
    s_cmp_eq_u32 s40, 0
    s_cbranch_scc0 L_hend
    s_mov_b32 s62, 0
    L_ep:''') + part_load() + I(f'''s_waitcnt vmcnt(0)
    v_cmp_ne_u32 vcc, v9, v15
    s_and_b32 vcc_lo, vcc_lo, 0x3ffffff
    s_cbranch_scc1 L_ep
    s_add_u32 s62, s62, {128*256}
    s_cmp_lt_u32 s62, {1024*256}
    s_cbranch_scc1 L_ep
    v_mov_b32 v8, {WS_EPOCH}
    global_store_dword v8, v9, s[24:25] sc0 sc1
    L_hend:''')
    L += finish_debug('L_tsB') + I('s_endpgm') + slow
    return L

prog = stamp(0) + I('''s_load_dwordx16 s[4:19], s[0:1], 0
s_load_dwordx4 s[20:23], s[0:1], 64
s_load_dwordx2 s[24:25], s[0:1], 80
s_cmp_ge_u32 s2, 256
s_cbranch_scc1 L_exit
s_and_b32 s41, s2, 7
s_lshr_b32 s43, s2, 3
s_cmp_ge_u32 s43, 26
s_cbranch_scc1 L_helper''') + dnn_path() + helper_path() + I('L_exit:\ns_endpgm')
n1 = KN + '_kernel'
txt = HDR_COMMENT + '; @launch grid=(256,1,1) block=(256,1,1) lds=163840\n.amdgcn_target "amdgcn-amd-amdhsa--gfx950"\n.text\n'
txt += kstart(n1) + finalize(prog) + '\n.section .rodata,"a"\n' + kd(n1, 512, 256)
out = [a for a in ARGS if not a.startswith('--')][0]
open(out, 'w').write(txt)
```

```python
import sys, os
from common import *
from prep import prep_code
ARGS = sys.argv[1:]
TS = '--ts' in ARGS; DBG = '--dbg' in ARGS
def opt(name, default):
    for a in ARGS:
        if a.startswith(f'--{name}='): return type(default)(a.split('=')[1])
    return default
LEAK = opt('leak', 0)
def stamp(i): return ts_stamp(i) if (TS or DBG or LEAK) else []
NST = 10
RING = 131072; IDXS = RING + 16384; CWB = 98304
WS_EPOCH = 61440
WS_PART = 65536
PART_BYTES = 1024 * 256
DBG_CNT = 128
OOB = 0x7fffffff
XE = lambda i: 16 + i
XO = lambda i: 42 + i
CA = lambda m, cb: vr(16 + 16 * (2 * m + cb), 16)
OWN = 80
PT = 68
XI = lambda fs, mb: 228 + 4 * fs + mb
def Pfrag(s, cb):
    return vr(112 + 8 * s + 4 * cb, 4) if s < 18 else ar(172 + 8 * (s - 18) + 4 * cb, 4)
def acc(nb, mb): return vr(OWN + 16 * nb, 16) if mb == 0 else ar(32 * (mb - 1) + 16 * nb, 16)
WF = lambda buf, nb, q=None: ar(96 + 8 * buf + 4 * nb, 4) if q is None else ar(96 + 8 * buf + 4 * nb + 2 * q, 2)
XF = lambda buf, mb: ar(112 + 16 * buf + 4 * mb, 4)
BIAS, ONE, W2 = 144, 152, 156
AFR = lambda s, m: ar(96 + 8 * (s % 6) + 4 * m, 4)

def merge(D, C, ratio):
    out = []; i = j = 0
    while i < len(D) or j < len(C):
        if i < len(D) and D[i] != 'SYNC':
            x = D[i]; i += 1
            out += x if isinstance(x, list) else [x]
        k = 0
        while j < len(C) and C[j] != 'SYNC' and (k < ratio or i >= len(D) or D[i] == 'SYNC'):
            out.append(C[j]); k += 0 if isinstance(C[j], WaitTag) else 1; j += 1
        if i < len(D) and D[i] == 'SYNC' and j < len(C) and C[j] == 'SYNC': i += 1; j += 1
        elif j < len(C) and C[j] == 'SYNC' and i >= len(D): j += 1
    return out

def wdma(n):
    fs = min(n >> 2, 6)
    L = I(f's_add_u32 m0, s26, {(n & 3) * 8192}')
    first = (n & 3) == 0
    if not first: L += I(f's_add_u32 s{44+fs}, s{44+fs}, {16*3328}')
    L += I(f'buffer_load_dwordx4 v4, s[36:39], s{44+fs} offen lds', tag=f'W{n}')
    L += I(f'buffer_load_dwordx4 v5, s[36:39], s{44+fs} offen offset:1024 lds', tag=f'W{n}')
    return L

def pgen_frag(s, cb, X, dst_v, T):
    L = []
    for jp in range(4):
        src = []
        for e in range(2):
            sl = slot(8 * s + 2 * jp + e)
            if sl[0] == 'mul':
                t = T + (2 * jp + e) % 4
                L += I(f'v_mul_f32 v{t}, v{X(sl[1])}, v{X(sl[2])}'); src.append(f'v{t}')
            elif sl[0] == 'lin': src.append(f'v{X(sl[1])}')
            elif sl[0] == 'one': src.append('1.0')
            else: src.append('0')
        L += I(f'v_cvt_pk_bf16_f32 v{dst_v + jp}, {src[0]}, {src[1]}', tag='P')
    return L

def pgen_all():
    out = []
    for s in list(range(18, 24)) + list(range(18)):
        for cb in range(2):
            X = XE if cb == 0 else XO
            if s < 18: out.append(pgen_frag(s, cb, X, 112 + 8 * s + 4 * cb, PT))
            else:
                tmp = PT + 4 + 4 * cb
                L = pgen_frag(s, cb, X, tmp, PT)
                for k in range(4): L += I(f'v_accvgpr_write_b32 a{172 + 8*(s-18) + 4*cb + k}, v{tmp + k}', tag='P')
                out.append(L)
    return out

def x_unpack():
    L = []
    for i in range(26): L += I(f'v_lshlrev_b32 v{XE(i)}, 16, v{XO(i)}\nv_and_b32 v{XO(i)}, 0xffff0000, v{XO(i)}')
    return L

def cw_off(g):
    if g < 32: return 10, ((2 + (g >> 3)) & 3) * 8192 + (g & 7) * 1024
    return 11, (g - 32) * 1024
def cin_reads(s):
    L = []
    for m in range(2):
        if m == 0 and s >= 22: continue
        b, off = cw_off(fragidx(s, m))
        L += I(f'ds_read_b128 {AFR(s, m)}, v{b} offset:{off}')
    return L
def cin_mfmas(s):
    L = []
    for m in range(2):
        if m == 0 and s >= 22: continue
        for cb in range(2):
            L += I(f'v_mfma_f32_32x32x16_bf16 {CA(m, cb)}, {AFR(s, m)}, {Pfrag(s, cb)}, {"0" if s == 0 else CA(m, cb)}', tag='CIN')
    return L

def part_load():
    return I('buffer_load_dwordx2 v[14:15], v12, s[28:31], s62 offen sc1')
def final_setup():
    return I(f'''s_add_u32 s28, s24, {WS_PART}
    s_addc_u32 s29, s25, 0
    s_mov_b32 s30, {PART_BYTES}
    s_mov_b32 s31, 0x20000
    s_lshl_b32 s62, s61, 8
    v_lshlrev_b32 v12, 3, v1
    v_mov_b32 v13, {OOB}
    v_cmp_gt_u32 vcc, 26, v1
    v_cndmask_b32 v12, v13, v12, vcc''')
def final_tail(sfx):
    L = I('v_mul_f32 v8, v16, v48\nv_mul_f32 v9, v32, v64')
    for r in range(1, 16): L += I(f'v_fmac_f32 v8, v{16+r}, v{48+r}\nv_fmac_f32 v9, v{32+r}, v{64+r}')
    L += I('v_add_f32 v8, v8, v9')
    L += srd(96, 20, 2048)
    L += I(f'''s_lshl_b32 s63, s63, 16
    s_lshl_b32 s61, s61, 1
    v_mov_b32 v9, s27
    L_chk{sfx}:
    s_waitcnt vmcnt(0)
    v_cmp_ne_u32 vcc, v9, v15
    s_and_b32 vcc_lo, vcc_lo, 0x3ffffff
    s_cbranch_scc1 L_slow{sfx}
    v_add_f32 v8, v8, v14''')
    for sh in (1, 2, 4, 8):
        L += I(f'v_add_f32_dpp v8, v8, v8 row_shr:{sh} row_mask:0xf bank_mask:0xf bound_ctrl:1')
    L += I('v_add_f32_dpp v8, v8, v8 row_bcast:15 row_mask:0xa bank_mask:0xf')
    L += I('v_add_f32_dpp v8, v8, v8 row_bcast:31 row_mask:0xc bank_mask:0xf')
    if LEAK and sfx == 'A':
        L += stamp(8) + I(f'''s_waitcnt lgkmcnt(0)
        s_cmp_ge_u32 s61, 16
        s_cbranch_scc1 L_noleak
        s_sub_u32 s3, s80, s64
        s_cmp_lt_u32 s3, {LEAK}
        s_cbranch_scc1 L_noleak
        s_mov_b32 s63, 0''')
        for k, st in enumerate([1, 2, 3, 4, 5, 6, 7, 8]):
            L += I(f's_sub_u32 s3, s{64+2*st}, s64\ns_cmp_eq_u32 s61, {2*k}\ns_cselect_b32 s63, s3, s63')
        L += I('v_cvt_f32_u32 v8, s63\nv_mul_f32 v8, 0x3c23d70a, v8\ns_mov_b32 s63, 0\nL_noleak:')
    L += I('''v_add_f32 v8, s63, v8
    v_cmp_eq_u32 vcc, 63, v1
    v_cvt_pk_bf16_f32 v8, v8, v8
    v_cndmask_b32 v13, v13, 0, vcc
    buffer_store_short v8, v13, s[96:99], s61 offen''')
    slow = I(f'L_slow{sfx}:\ns_sleep 1') + part_load() + I(f's_branch L_chk{sfx}')
    return L, slow

def gelu(x, t):
    return I(f'''v_mul_f32 v{t}, v{x}, v{x}
    v_fma_f32 v{t}, v{t}, s60, v9
    v_mul_f32 v{t}, v{t}, v{x}
    v_exp_f32 v{t}, v{t}
    v_add_f32 v{t}, 1.0, v{t}
    v_rcp_f32 v{t}, v{t}
    v_mul_f32 v{x}, v{x}, v{t}''')

def finish_debug(lbl):
    L = I('s_waitcnt vmcnt(0)') + stamp(NST - 1)
    if TS: L += ts_out(NST, lbl)
    if DBG:
        L += I(f'''s_waitcnt lgkmcnt(0)
        s_cmp_eq_u32 s2, {opt("dbgwg", 0)}
        s_cbranch_scc0 {lbl}
        v_mov_b32 v1, 0
        v_mov_b32 v8, s64
        global_store_dword v1, v8, s[22:23] offset:16''')
        for i in range(1, NST):
            L += I(f's_sub_u32 s3, s{64+2*i}, s64\nv_mov_b32 v8, s3\nglobal_store_dword v1, v8, s[22:23] offset:{16+4*i}')
        L += I(f'{lbl}:')
    return L

def dnn_path():
    pre = I('''s_mul_i32 s41, s41, 26
    s_add_u32 s41, s41, s43
    s_and_b32 s42, s41, 7
    s_lshr_b32 s41, s41, 3
    v_lshrrev_b32 v8, 6, v0
    v_and_b32 v1, 63, v0
    v_readfirstlane_b32 s40, v8
    v_lshlrev_b32 v9, 4, v1
    v_lshrrev_b32 v10, 3, v1
    v_and_b32 v11, 7, v1
    v_lshrrev_b32 v12, 1, v10
    v_xor_b32 v13, v11, v12
    v_lshlrev_b32 v13, 4, v13
    v_lshl_add_u32 v2, v10, 7, v13
    v_xor_b32 v3, 64, v2
    s_lshl_b32 s58, s40, 12
    s_mul_i32 s60, s42, 13312
    s_add_u32 s60, s60, s58''')
    pre += I(f's_add_u32 m0, s58, {IDXS}')
    pre += I(f'''v_and_b32 v12, 1, v12
    v_lshlrev_b32 v12, 2, v12
    v_xor_b32 v12, v11, v12
    v_lshlrev_b32 v12, 4, v12
    s_movk_i32 s58, 3328
    v_mad_u32_u24 v4, v10, s58, v12
    v_add_u32 v5, {8*3328 - 1024}, v4
    s_lshl_b32 s26, s40, 11
    s_add_u32 s26, s26, {RING}
    s_mul_i32 s61, s42, 6
    s_lshr_b32 s61, s61, 3
    s_mul_i32 s62, s40, 6
    s_lshl_b32 s63, s41, 7
    s_add_u32 s58, s61, s62
    s_mul_i32 s44, s58, {64*3328}
    s_add_u32 s44, s44, s63
    s_lshl_b32 s51, s58, 2''')
    pre += I('s_waitcnt lgkmcnt(0)')
    pre += srd(28, 4, 106496)
    D = []
    for u in range(4): D.append(I(f'buffer_load_dwordx4 v9, s[28:31], s60 offen offset:{1024*u} lds', tag='idx'))
    D[0] = D[0] + srd(36, 12, 1664 * 3328)
    D[1] = D[1] + srd(32, 6, 128000)
    D[2] = D[2] + I(f's_load_dword s63, s[18:19], 0\ns_lshl_b32 s3, s43, 2\ns_add_u32 s3, s3, s40')
    w01 = wdma(0) + wdma(1)
    D.append(w01[:2]); D.append(w01[2:3]); D.append(w01[3:6]); D.append(w01[6:])
    tab = []
    for q in range(8):
        for u in range(4):
            x = I(f'buffer_load_dwordx4 v{2 + (u & 1)}, s[32:35], s96 offen offset:{1024*u} lds', tag='tab')
            if u == 0: x = I('s_and_b32 s96, s3, 31\ns_lshl_b32 s96, s96, 12\ns_mov_b32 m0, s96\ns_add_u32 s3, s3, 4') + x
            tab.append(x)
    n1 = opt('n1', 8); n2 = opt('n2', 16)
    D += tab[:n1] + ['SYNC'] + tab[n1:n2] + ['SYNC']
    w23 = wdma(2) + wdma(3)
    rest = tab[n2:]
    D += [w23[:3], w23[3:4], w23[4:7], w23[7:]] + rest
    C = []
    C += I('s_lshl_b32 s59, s41, 7')
    for fs in range(1, 6):
        C += I(f'''s_add_u32 s58, s61, {fs}
        s_sub_u32 s{51+fs}, s58, 6
        s_min_u32 s58, s58, s{51+fs}
        s_add_u32 s58, s58, s62
        s_mul_i32 s{44+fs}, s58, {64*3328}
        s_add_u32 s{44+fs}, s{44+fs}, s59
        s_lshl_b32 s{51+fs}, s58, 2''')
    C += I(f'''s_lshr_b32 s58, s40, 1
    s_add_u32 s58, s58, 24
    s_lshl_b32 s57, s58, 2
    s_add_u32 s58, s40, 48
    s_mul_i32 s50, s58, {32*3328}
    s_add_u32 s50, s50, s59''')
    C += I('''v_bfe_u32 v10, v1, 2, 2
    v_lshrrev_b32 v11, 5, v1
    v_lshl_add_u32 v12, v11, 3, v10
    v_lshlrev_b32 v12, 7, v12
    v_bfe_u32 v13, v1, 4, 1
    v_lshl_add_u32 v12, v13, 5, v12
    v_and_b32 v13, 3, v1
    v_lshl_add_u32 v12, v13, 3, v12
    v_lshrrev_b32 v13, 1, v10
    v_lshlrev_b32 v13, 6, v13
    v_xor_b32 v12, v12, v13
    v_add_u32 v6, s26, v12
    v_xor_b32 v7, 64, v6
    v_and_b32 v10, 31, v1
    v_mul_u32_u24 v8, 104, v10''')
    for mb in range(4):
        C += I(f's_add_u32 s58, s40, {mb}\ns_and_b32 s58, s58, 3\ns_mul_i32 s58, s58, 3328\ns_add_u32 s58, s58, {IDXS}\nv_add_u32 v{12+mb}, s58, v8')
    for fs in range(7):
        for mb in range(4): C += I(f'v_add_u32 v{XI(fs, mb)}, s{51+fs}, v{12+mb}')
    C += I(f'''s_lshl_b32 s61, s41, 2
    s_add_u32 s61, s61, s40
    s_mul_i32 s58, s61, 104
    s_add_u32 s58, s58, {IDXS}
    v_lshl_add_u32 v12, v11, 2, s58
    v_mul_u32_u24 v13, 100, v11
    v_sub_u32 v13, 100, v13
    v_add_u32 v13, s58, v13
    s_lshl_b32 s58, s42, 7
    s_add_u32 s61, s61, s58
    v_lshlrev_b32 v11, 4, v11
    v_lshrrev_b32 v14, 2, v10
    v_lshlrev_b32 v14, 4, v14
    v_and_b32 v15, 3, v10
    v_lshl_add_u32 v14, v15, 2, v14
    s_and_b32 s58, s40, 1
    s_lshl_b32 s58, s58, 6
    v_xor_b32 v15, s58, v11''')
    C += ['SYNC', WaitTag('idx')] + I('s_barrier')
    for fs in range(7):
        for mb in range(4): C += I(f'ds_read_b32 v{XI(fs, mb)}, v{XI(fs, mb)}')
    for i in range(25): C += I(f'ds_read_b32 v{XO(i)}, v12 offset:{4*i}')
    C += I(f'ds_read_b32 v{XO(25)}, v13')
    C += srd(96, 14, 3328)[0:0]
    C += I('s_waitcnt lgkmcnt(0)\ns_barrier') + ['SYNC']
    C += I('s_movk_i32 s59, 0x70')
    for fs in range(7):
        for mb in range(4):
            r = XI(fs, mb)
            C += I(f'v_lshlrev_b32 v8, 3, v{r}\nv_bitop3_b32 v8, v8, s59, v{15 if fs == 6 else 11} bitop3:0x6a\nv_lshl_add_u32 v{r}, v{r}, 7, v8')
    for i in range(26):
        r = XO(i)
        C += I(f'v_lshlrev_b32 v8, 3, v{r}\nv_bitop3_b32 v8, v8, s59, v14 bitop3:0x6a\nv_lshl_add_u32 v{r}, v{r}, 7, v8')
    L = pre + merge(D, C, opt('ratio', 9))
    L += srd(96, 14, 3328)
    L += I(f'''v_lshlrev_b32 v8, 1, v10
    v_mov_b32 v12, {OOB}
    v_cmp_gt_u32 vcc, 32, v1
    v_cndmask_b32 v8, v12, v8, vcc
    s_lshl_b32 s60, s41, 7
    v_mov_b32 v12, 0x3f80
    v_cndmask_b32 v12, 0, v12, vcc''')
    for r in range(BIAS, BIAS + 12):
        if r not in (BIAS, BIAS + 4, ONE): L += I(f'v_accvgpr_write_b32 a{r}, 0')
    L += I(f'''v_accvgpr_write_b32 a{ONE}, v12
    buffer_load_ushort a{BIAS}, v8, s[96:99], s60 offen
    buffer_load_ushort a{BIAS+4}, v8, s[96:99], s60 offen offset:64
    s_mov_b32 s96, s16
    s_mov_b32 s97, s17
    v_lshrrev_b32 v8, 1, v11''')
    for nb in range(2):
        for rq in range(4):
            L += I(f'buffer_load_dwordx2 {ar(W2 + 8*nb + 2*rq, 2)}, v8, s[96:99], s60 offen offset:{64*nb + 16*rq}')
    L += stamp(1)
    L += [WaitTag('tab')] + I('s_barrier')
    L += stamp(2)
    def reads(n):
        fs = min(n >> 2, 6); t = n & 3; buf = n & 1
        R = [WaitTag(f'W{n}')]
        for nb in range(2):
            for q in range(2):
                R += I(f'ds_read_b64_tr_b16 {WF(buf, nb, q)}, v{6+nb} offset:{(n & 3) * 8192 + q * 512}', tag=f'R{n}')
        for mb in range(4):
            r = XI(fs, mb)
            if t: R += I(f'v_xor_b32 v{r}, {96 if t == 2 else 32}, v{r}')
            R += I(f'ds_read_b128 {XF(buf, mb)}, v{r}', tag=f'R{n}')
        return R
    filler = []
    for i in range(26): filler += I(f'ds_read_b32 v{XO(i)}, v{XO(i)}', tag='xr')
    xr = filler; filler = []
    filler += x_unpack()
    pg = pgen_all()
    marks = {}
    for k, fr in enumerate(pg):
        marks[len(filler)] = k; filler += fr
    L += reads(0) + xr
    nf = len(filler); fpos = 0
    tot_slots = 26 * 8
    f_start = opt('fstart', 4)
    for n in range(26):
        buf = n & 1
        mf = []
        for mb in range(4):
            for nb in range(2):
                mf += I(f'v_mfma_f32_32x32x16_bf16 {acc(nb, mb)}, {WF(buf, nb)}, {XF(buf, mb)}, {"0" if n == 0 else acc(nb, mb)}')
        side = []
        if n + 4 < 26: side += wdma(n + 4)
        elif n >= 22:
            o = n - 22
            side += I(f's_add_u32 m0, s26, {(n & 3) * 8192}\ns_add_u32 s58, s58, 8192' if o else f's_add_u32 m0, s26, {(n & 3) * 8192}\ns_lshl_b32 s58, s40, 11')
            for u in range(2): side += I(f'buffer_load_dwordx4 v9, s[32:35], s58 offen offset:{1024*u} sc1 lds', tag=f'CW{o}')
        if n + 1 < 26: side += reads(n + 1)
        if n == opt('flagstep', 18):
            side += I(f'v_mov_b32 v8, 0\nglobal_load_dwordx2 v[12:13], v8, s[22:23]')
        if n == 20:
            side += srd(32, 24, NFRAG * 1024)
        out = [WaitTag(f'R{n}')]
        if n == 21: out += I('L_cwchk:\nv_readfirstlane_b32 s58, v12\nv_readfirstlane_b32 s27, v13\ns_cmp_eq_u32 s58, 0\ns_cbranch_scc1 L_cwslow')
        k = 0
        nside = sum(1 for x in side if not isinstance(x, WaitTag) and x.kind != 'label')
        for j, m in enumerate(mf):
            out.append(m)
            gi = n * 8 + j
            c = 0
            while k < len(side) and c < 3:
                out.append(side[k])
                if not isinstance(side[k], WaitTag) and side[k].kind != 'label': c += 1
                k += 1
            target = int(nf * max(0, gi + 1 - f_start) / (tot_slots - f_start) + 0.999)
            room = opt('room', 6) - c
            while fpos < min(nf, target + 3) and room > 0:
                if fpos in marks and marks[fpos] >= 41:
                    fs = marks[fpos] - 41
                    last_read_step = 4 * fs + 2 if fs < 6 else 24
                    if n <= last_read_step: break
                out.append(filler[fpos]); fpos += 1; room -= 1
        out += side[k:]
        L += out
    L += filler[fpos:]
    print('filler left after main:', nf - fpos, file=sys.stderr)
    L += stamp(3)
    L += I(f'v_add_u32 v10, {RING}, v9\nv_add_u32 v11, {CWB}, v9')
    for mb in range(1, 4):
        L += I(f's_add_u32 s58, s40, {mb}\ns_and_b32 s58, s58, 3\ns_mul_i32 s58, s58, 24576\nv_add_u32 v{1+mb}, s58, v9')
    L += I('s_mul_i32 s58, s40, 24576\nv_add_u32 v5, s58, v9')
    for nb in range(2):
        L += I(f'v_mfma_f32_32x32x16_bf16 {acc(nb, 0)}, {ar(BIAS + 4*nb, 4)}, {ar(ONE, 4)}, {acc(nb, 0)}')
    L += [WaitTag(['CW0', 'CW1'])] + I('s_barrier')
    L += stamp(4)
    EX = []
    EX += I(f's_lshl_b32 s58, s40, 12\ns_add_u32 m0, s58, {CWB}\ns_add_u32 s58, s58, 32768')
    for u in range(4): EX += I(f'buffer_load_dwordx4 v9, s[32:35], s58 offen offset:{1024*u} sc1 lds', tag='CW4')
    for mb in range(1, 4):
        for nb in range(2):
            for rq in range(4):
                EX += I(f'ds_write_b128 v{1+mb}, {ar(32*(mb-1) + 16*nb + 4*rq, 4)} offset:{(mb-1)*8192 + (nb*4+rq)*1024}', tag='xw')
    EX1 = EX
    EX = final_setup()
    EX += I(f's_mov_b32 s60, {f2u(GELU_C1):#x}\nv_mov_b32 v9, {f2u(GELU_C0):#x}')
    RT = 112
    def rdq(q):
        return [x for sidx in range(3) for x in I(f'ds_read_b128 {vr(RT + 12*(q&1) + 4*sidx, 4)}, v5 offset:{sidx*8192 + q*1024}')]
    EX += rdq(0) + rdq(1)
    for q in range(8):
        b = RT + 12 * (q & 1)
        for e in range(4): EX += I(f'v_add_f32 v{b+e}, v{b+e}, v{b+4+e}')
        for e in range(4): EX += I(f'v_add_f32 v{OWN+4*q+e}, v{OWN+4*q+e}, v{b+8+e}')
        for e in range(4): EX += I(f'v_add_f32 v{OWN+4*q+e}, v{OWN+4*q+e}, v{b+e}')
        if q + 2 < 8: EX += rdq(q + 2)
        ch = [gelu(OWN + 4*q + e, 136 + e) for e in range(4)]
        for k in range(7):
            for e in range(4): EX.append(ch[e][k])
        EX += I(f'v_cvt_pk_bf16_f32 v{144+2*q}, v{OWN+4*q}, v{OWN+4*q+1}\nv_cvt_pk_bf16_f32 v{145+2*q}, v{OWN+4*q+2}, v{OWN+4*q+3}')
        if q & 1:
            sg = q >> 1
            EX += I(f'v_mfma_f32_32x32x16_bf16 v[160:175], {ar(W2 + 4*sg, 4)}, {vr(144 + 4*sg, 4)}, {"0" if sg == 0 else "v[160:175]"}')
    EX += I(f'''s_lshl_b32 s58, s42, 7
    s_lshl_b32 s59, s40, 5
    s_add_u32 s58, s58, s59
    s_lshl_b32 s58, s58, 8
    s_lshl_b32 s59, s41, 3
    s_add_u32 s58, s58, s59
    v_lshlrev_b32 v8, 8, v1
    v_cmp_gt_u32 vcc, 32, v1
    v_cndmask_b32 v8, v13, v8, vcc
    v_mov_b32 v161, s27
    buffer_store_dwordx2 v[160:161], v8, s[28:31], s58 offen sc0 sc1''')
    EX += stamp(6)
    EX2 = EX
    LA = opt('la', 3)
    E = []
    for s in range(LA): E += cin_reads(s)
    p1 = p2 = 0; bar_done = False
    ex_rate = opt('exrate', 6)
    for s in range(24):
        mf = cin_mfmas(s)
        pre_r = cin_reads(s + LA) if s + LA < 24 else []
        need_bar = (s + LA >= 8)
        if need_bar and not bar_done:
            E += EX1[p1:]; p1 = len(EX1)
            E += [WaitTag(['CW2', 'CW3', 'CW4', 'xw'])] + I('s_barrier') + stamp(5); bar_done = True
        for j, m in enumerate(mf):
            E.append(m)
            if j < len(pre_r): E.append(pre_r[j])
            if not bar_done:
                for _ in range(opt('wrate', 2)):
                    if p1 < len(EX1): E.append(EX1[p1]); p1 += 1
            else:
                c = 0
                while p2 < len(EX2) and c < ex_rate:
                    E.append(EX2[p2]); c += 2 if EX2[p2].kind == 'trans' else 1; p2 += 1
        if s == opt('pollstep', 21): E += part_load() if p2 >= len(final_setup()) else []
    E += EX2[p2:]
    print('EX2 left after CIN:', len(EX2) - p2, file=sys.stderr)
    L += E
    check_locked(L, lambda x: x.tag == 'P', lambda x: x.tag == 'CIN', 2)
    for fs in range(7):
        for mb in range(4):
            r = f'v{XI(fs, mb)}'
            lastr = max(i for i, x in enumerate(L) if isinstance(x, Ins) and x.op == 'ds_read_b128' and x.ops[1].split()[0] == r and x.tag)
            firstp = min(i for i, x in enumerate(L) if isinstance(x, Ins) and x.tag == 'P' and r in x.defs)
            assert firstp > lastr, (fs, mb)
    L += stamp(7)
    tail, slow = final_tail('A')
    L += tail + stamp(8) + finish_debug('L_tsA') + I('s_endpgm') + slow
    L += I(f'L_cwslow:\ns_sleep 4\nglobal_load_dwordx2 v[12:13], v8, s[22:23] sc1\ns_waitcnt vmcnt(0)\ns_branch L_cwchk')
    return L

def helper_path():
    L = I(f'''L_helper:
    s_sub_u32 s40, s43, 26
    s_lshl_b32 s40, s40, 3
    s_add_u32 s40, s40, s41
    s_mov_b32 s84, s40
    s_waitcnt lgkmcnt(0)
    s_load_dword s27, s[24:25], {WS_EPOCH}
    s_load_dword s85, s[18:19], 0
    s_cmp_ge_u32 s40, 32
    s_cbranch_scc1 L_signal''')
    L += prep_code(I('s_waitcnt vmcnt(0)\ns_barrier'))
    L += I(f'''L_signal:
    s_waitcnt lgkmcnt(0)
    s_add_u32 s27, s27, 1
    v_mov_b32 v8, 0
    v_mov_b32 v2, 1
    v_mov_b32 v3, s27
    v_cmp_eq_u32 vcc, 192, v0
    s_and_saveexec_b64 s[44:45], vcc
    s_cbranch_execz L_noadd
    global_atomic_add v4, v8, v2, s[22:23] offset:{DBG_CNT} sc0 sc1
    s_waitcnt vmcnt(0)
    v_readfirstlane_b32 s58, v4
    s_cmp_eq_u32 s58, 47
    s_cbranch_scc0 L_noadd
    global_store_dwordx2 v8, v[2:3], s[22:23] sc0 sc1
    global_store_dwordx2 v8, v[2:3], s[22:23] offset:192 sc0 sc1
    v_mov_b32 v8, {WS_EPOCH}
    global_store_dword v8, v3, s[24:25] sc0 sc1
    L_noadd:
    s_mov_b64 exec, -1''')
    L += stamp(1)
    XS = 0
    L += I('''v_and_b32 v1, 63, v0
    v_lshrrev_b32 v8, 6, v0
    v_lshrrev_b32 v10, 3, v1
    v_readfirstlane_b32 s40, v8
    v_lshlrev_b32 v9, 4, v1
    s_and_b32 s61, s84, 7
    s_lshl_b32 s61, s61, 7
    s_lshr_b32 s58, s84, 3
    s_lshl_b32 s58, s58, 2
    s_add_u32 s61, s61, s58
    s_add_u32 s61, s61, s40
    s_add_u32 s61, s61, 104
    s_mul_i32 s42, s61, 104
    s_mov_b32 s63, s85''')
    for u in range(4): L += I(f'v_add_u32 v{12+u}, {8*u}, v10')
    L += I('v_cmp_gt_u32 vcc, 26, v15\nv_cndmask_b32 v15, 0, v15, vcc')
    for u in range(4): L += I(f'v_lshlrev_b32 v{12+u}, 2, v{12+u}')
    L += srd(28, 4, 106496) + srd(36, 6, 128000) + srd(32, 24, NFRAG * 1024)
    for u in range(4): L += I(f'buffer_load_dword v{12+u}, v{12+u}, s[28:31], s42 offen')
    L += I(f'''v_and_b32 v11, 7, v1
    v_lshlrev_b32 v11, 4, v11
    s_lshl_b32 s44, s40, 12
    s_barrier''')
    for u in range(4):
        L += I(f's_add_u32 m0, s44, {1024*u}\nv_lshl_add_u32 v{12+u}, v{12+u}, 7, v11\nbuffer_load_dwordx4 v{12+u}, s[36:39], 0 offen lds', tag='xr')
    L += I('''v_and_b32 v5, 31, v1
    v_lshlrev_b32 v5, 2, v5
    v_lshrrev_b32 v6, 5, v1
    v_lshl_add_u32 v5, v6, 7, v5
    v_add_u32 v5, s44, v5''')
    L += [WaitTag('xr')]
    for i in range(26): L += I(f'ds_read_b32 v{XO(i)}, v5 offset:{128*i}')
    L += x_unpack()
    for fr in pgen_all(): L += fr
    L += final_setup()
    L += I(f'v_add_u32 v10, {RING}, v9\nv_add_u32 v11, {CWB}, v9\nv_mov_b32 v8, 0')
    L += stamp(2)
    L += I(f'''s_cmp_lg_u32 s40, 0
    s_cbranch_scc1 L_hgo
    L_hpoll:
    global_load_dword v2, v8, s[22:23] offset:192 sc1
    s_waitcnt vmcnt(0)
    v_readfirstlane_b32 s58, v2
    s_cmp_lg_u32 s58, 0
    s_cbranch_scc1 L_hgo
    s_sleep 10
    s_branch L_hpoll
    L_hgo:
    s_barrier''')
    L += stamp(3)
    L += I(f's_lshl_b32 s58, s40, 11\ns_add_u32 s26, s58, {RING}')
    for o in range(4):
        L += I(f's_add_u32 m0, s26, {((2 + o) & 3) * 8192}')
        for u in range(2): L += I(f'buffer_load_dwordx4 v9, s[32:35], s58 offen offset:{1024*u} sc1 lds')
        L += I('s_add_u32 s58, s58, 8192')
    L += I(f's_lshl_b32 s58, s40, 12\ns_add_u32 m0, s58, {CWB}\ns_add_u32 s58, s58, 32768')
    for u in range(4): L += I(f'buffer_load_dwordx4 v9, s[32:35], s58 offen offset:{1024*u} sc1 lds')
    L += I('s_waitcnt vmcnt(0)\ns_barrier')
    L += stamp(4) + stamp(5) + stamp(6)
    LA = 3
    for s in range(LA): L += cin_reads(s)
    for s in range(24):
        mf = cin_mfmas(s); pr = cin_reads(s + LA) if s + LA < 24 else []
        for j, m in enumerate(mf):
            L.append(m)
            if j < len(pr): L.append(pr[j])
    L += part_load()
    L += stamp(7)
    tail, slow = final_tail('B')
    L += tail + stamp(8)
    L += finish_debug('L_tsB') + I('s_endpgm') + slow
    return L

prog = stamp(0) + I('''s_load_dwordx16 s[4:19], s[0:1], 0
s_load_dwordx4 s[20:23], s[0:1], 64
s_load_dwordx2 s[24:25], s[0:1], 80
s_cmp_ge_u32 s2, 256
s_cbranch_scc1 L_exit
s_and_b32 s41, s2, 7
s_lshr_b32 s43, s2, 3
s_cmp_ge_u32 s43, 26
s_cbranch_scc1 L_helper''') + dnn_path() + helper_path() + I('L_exit:\ns_endpgm')
n1 = KN + '_kernel'
txt = HDR_COMMENT + '; @launch grid=(256,1,1) block=(256,1,1) lds=163840\n.amdgcn_target "amdgcn-amd-amdhsa--gfx950"\n.text\n'
txt += kstart(n1) + finalize(prog) + '\n.section .rodata,"a"\n' + kd(n1, 512, 256)
out = [a for a in ARGS if not a.startswith('--')][0]
open(out, 'w').write(txt)
```
